```python
import torch

def _softmax(x, axis=-1):
    return torch.softmax(x, dim=axis)
def _gelu(x):
    return torch.nn.functional.gelu(x, approximate="tanh")
def _silu(x):
    return torch.nn.functional.silu(x)
def _sigmoid(x):
    return torch.sigmoid(x)
def _layernorm(x, axis=-1, eps=1e-5):
    m = x.mean(dim=axis, keepdim=True)
    v = x.var(dim=axis, keepdim=True, unbiased=False)
    return (x - m) / torch.sqrt(v + eps)
def _scatter_add(tgt, idx, src, axis=0):
    return tgt.clone().index_add_(axis, idx, src)
def _segment_sum(src, seg, n):
    out = torch.zeros((n,) + src.shape[1:], dtype=src.dtype)
    return out.index_add_(0, seg, src)
def _pad(x, pw):
    flat = tuple(v for pair in reversed(pw) for v in pair)
    return torch.nn.functional.pad(x, flat)

kernel_name = 'standalone__qk_norm__prompt'

def setup_inputs():

    _w = (lambda a: (lambda t: t.to(torch.bfloat16) if t.is_floating_point() else t)(torch.as_tensor(a)))
    B, H, S, D = 2, 32, 2048, 1024
    Dh = D // H
    return {
        "q": _w((lambda *s: torch.randn(*s, dtype=torch.bfloat16) * 0.05)(B, H, S, Dh)),
        "k": _w((lambda *s: torch.randn(*s, dtype=torch.bfloat16) * 0.05)(B, H, S, Dh)),
        "v": _w((lambda *s: torch.randn(*s, dtype=torch.bfloat16) * 0.8)(B, H, S, Dh)),
        "t": _w(torch.abs((lambda *s: torch.randn(*s, dtype=torch.bfloat16) * 0.8)(H)) + 1.0),
    }

def reference(q, k, v, t):
    eps = 1e-6
    qn = q / (torch.sqrt((q * q).sum(axis=-1, keepdims=True)) + eps)
    kn = k / (torch.sqrt((k * k).sum(axis=-1, keepdims=True)) + eps)
    logits = torch.einsum('bhqd,bhkd->bhqk', qn, kn) * t[None, :, None, None]
    attn = _softmax(logits, axis=-1)
    return torch.einsum('bhqk,bhkd->bhqd', attn, v)
```

```python
import re

def rg(b, n, t='v'):
    return f"{t}{b}" if n == 1 else f"{t}[{b}:{b+n-1}]"

_REG = re.compile(r'^-?\|?(abs\()?([vas])(\d+|\[(\d+):(\d+)\])\)?\|?$')
def regs_of(tok):
    tok = tok.strip()
    m = _REG.match(tok)
    if not m:
        if tok == 'vcc': return {('s', 106), ('s', 107)}
        if tok == 'm0': return {('s', 124)}
        if tok == 'exec': return {('s', 126), ('s', 127)}
        return set()
    t = m.group(2)
    if m.group(4): return {(t, i) for i in range(int(m.group(4)), int(m.group(5)) + 1)}
    return {(t, int(m.group(3)))}

TRANS = ('v_exp_', 'v_log_', 'v_rcp_', 'v_rsq_', 'v_sqrt_', 'v_sin_', 'v_cos_')
def passes(mn):
    if '32x32' in mn: return 8
    if '16x16' in mn: return 4
    if '4x4' in mn: return 2
    raise ValueError(mn)

class I:
    def __init__(s, text):
        s.text = text
        t = text.split(';')[0].strip()
        s.label = t.endswith(':')
        s.dir = t.startswith('.') or not t
        p = t.split(None, 1)
        s.mn = p[0] if p else ''
        ops = []
        if len(p) > 1:
            ops = [o.strip() for o in re.split(r',(?![^\[]*\])', p[1])]
            if ops:
                last = ops[-1].split()
                ops[-1] = last[0]
                s.mods = last[1:]
        s.ops = ops
        mn = s.mn
        s.mfma = mn.startswith('v_mfma') or mn.startswith('v_smfmac')
        s.valu = mn.startswith('v_') and not s.mfma
        s.trans = mn.startswith(TRANS)
        s.dot = mn.startswith('v_dot')
        s.vmem = mn.startswith('buffer_') or mn.startswith('global_')
        s.ds = mn.startswith('ds_')
        s.states = 1
        if mn == 's_nop': s.states = int(ops[0], 0) + 1
        if s.label or s.dir: s.states = 0
        R = [regs_of(o) for o in ops]
        s.w = set(); s.r = set()
        if s.label or s.dir: return
        lds_dma = s.vmem and 'lds' in getattr(s, 'mods', [])
        s.lds_dma = lds_dma
        if mn.startswith('buffer_store') or mn.startswith('ds_write') or mn.startswith('global_store') or lds_dma \
           or mn.startswith('s_cmp') or mn.startswith('s_cbranch') or mn.startswith('buffer_atomic') or mn.startswith('global_atomic') \
           or mn in ('s_waitcnt', 's_nop', 's_barrier', 's_branch', 's_endpgm', 's_setprio', 's_sleep', 'buffer_inv', 'buffer_wbl2'):
            for x in R: s.r |= x
            if lds_dma: s.r |= {('s', 124)}
        elif mn.startswith('v_permlane') and 'swap' in mn:
            s.w = R[0] | R[1]; s.r = R[0] | R[1]
        else:
            s.w = R[0] if R else set()
            for x in R[1:]: s.r |= x
            if mn.startswith('v_smfmac') or mn.startswith('v_fmac') or mn.startswith('v_dot2c'):
                s.r |= R[0]
        if s.mfma:
            s.A = R[1]; s.B = R[2]; s.D = R[0]
            s.C = R[0] if mn.startswith('v_smfmac') else R[3]
            s.idx = R[3] if mn.startswith('v_smfmac') else set()
            s.p = passes(mn)

def check_path(lines, what=""):
    ins = [I(x) for x in lines]
    ins = [i for i in ins if not (i.label or i.dir)]
    probs = []
    vec = lambda S: {r for r in S if r[0] in 'va'}
    sca = lambda S: {r for r in S if r[0] == 's'}
    for j, c in enumerate(ins):
        dist = 0
        for k in range(j - 1, max(-1, j - 24), -1):
            p = ins[k]
            need = 0; why = ''
            pw = vec(p.w)
            if p.valu and c.mfma and pw & vec(c.r): need, why = (3 if p.dot else 2), 'valu->mfma'
            if p.mfma:
                d = p.D
                tab = {2: 5, 4: 8, 8: 12}[p.p]
                if c.mfma:
                    if d & (c.A | c.B | c.idx): need, why = tab, 'mfma->mfma AB'
                    elif d & c.C:
                        if c.C == d and c.p == p.p: need, why = (2 if p.p == 2 else 0), 'mfma chain'
                        else: need, why = {2: 4, 4: 6, 8: 10}[p.p], 'mfma->mfma C overlap'
                    elif d & c.D and not (c.C == d):
                        need, why = {2: 4, 4: 6, 8: 10}[p.p], 'mfma->mfma WAW (conservative)'
                elif (c.valu or c.vmem or c.ds) and d & (vec(c.r) | vec(c.w)): need, why = tab, 'mfma->valu/mem'
                if c.valu and vec(p.C) & vec(c.w):
                    n2 = {2: 1, 4: 3, 8: 7}[p.p]
                    if n2 > need: need, why = n2, 'mfma C WAR'
            if p.trans and c.valu and not c.trans and pw & vec(c.r): need, why = max(need, 1), why or 'trans->valu'
            if p.trans and c.valu and c.trans and pw & vec(c.r): need, why = max(need, 1), why or 'trans->trans(cons)'
            if p.dot and (c.valu or c.vmem or c.ds) and pw & (vec(c.r) | vec(c.w)):
                if c.dot and c.mn == p.mn and not (pw & (regs_of(c.ops[1]) | regs_of(c.ops[2]))): pass
                else: need, why = max(need, 3), 'dot->other'
            if p.valu and c.mn.startswith('v_permlane') and pw & vec(c.r): need, why = max(need, 2), 'valu->permlane'
            if p.valu and 'dpp' in c.mn and pw & vec(c.r): need, why = max(need, 2), 'valu->dpp'
            if p.valu and c.mn.startswith('v_read') and pw & vec(c.r): need, why = max(need, 1), 'valu->readlane'
            if p.valu and sca(p.w):
                if c.vmem and sca(p.w) & sca(c.r): need, why = max(need, 5), 'valu sgpr->vmem'
                if c.valu and sca(p.w) & (sca(c.r) | (regs_of('vcc') if c.mn.startswith('v_cndmask') else set())): need, why = max(need, 2), 'valu sgpr->valu'
                if c.mn.startswith('s_') and sca(p.w) & sca(c.r): need, why = max(need, 1), 'valu sgpr->salu(cons)'
            if p.mn.startswith('s_') and ('s', 124) in p.w and c.vmem and c.lds_dma: need, why = max(need, 1), 'm0->dma'
            if p.vmem and ('store' in p.mn) and ('x4' in p.mn or 'x3' in p.mn) and (c.valu or c.mfma) and regs_of(p.ops[0]) & vec(c.w):
                need, why = max(need, 2), 'store data WAR'
            if need > dist:
                probs.append(f"{what}: {why}: need {need} have {dist}:\n    {p.text}\n    {c.text}")
            dist += p.states
    return probs
```

```python
import sys
from asmlib import rg, check_path

NAME = "standalone__qk_norm__prompt"
OPT = dict(stamp=False, force_slow=False)
for a in sys.argv[2:]:
    k, v = a.split("="); OPT[k] = eval(v)

S = [0, 16, 32, 48]
O = [64, 80, 96, 112]
Q = [128, 136, 144, 152]
TMP = 160
KRAW = 192
L = [208, 212, 216, 220]
IDX, VKRD, VVRD, VKWR, VROW, VLIN = 224, 225, 226, 227, 228, 229
IDENT = 230
ONES = 232
RR = 236
MX = [240, 241, 242, 243]
VOUT = 244
T0, T1, T2 = 245, 246, 247
KF = [0, 8]
VF = [16, 24]
K0RAW = 16
sQ, sK, sV, sO = 16, 20, 24, 28
sW, sHEAD, sQTR, sT, sCNT, sKOFF, sVOFF, sM0, sQ0, sQ1, sTMP = 32, 33, 34, 35, 36, 37, 38, 39, 40, 41, 42
sST = 48

def qk(T, qt, m):
    c = "0" if m == 0 else rg(S[qt], 16)
    return f"v_mfma_f32_32x32x16_bf16 {rg(S[qt],16)}, {rg(KF[T&1]+4*m,4,'a')}, {rg(Q[qt]+4*m,4)}, {c}"
def pv(T, qt, m):
    return f"v_smfmac_f32_32x32x32_bf16 {rg(O[qt],16)}, {rg(VF[T&1]+4*m,4,'a')}, {rg(S[qt]+8*m,8)}, v{IDX}"
def rs(T, qt, m):
    return f"v_smfmac_f32_16x16x64_bf16 {rg(L[qt],4)}, {rg(ONES,4)}, {rg(S[qt]+8*m,8)}, v{IDX}"
def rdK(T, m):
    return f"ds_read_b128 {rg(KF[T&1]+4*m,4,'a')}, v{VKRD} offset:{T*2048+m*1024}"
def rdV(T, i):
    return f"ds_read_b64_tr_b16 {rg(VF[T&1]+2*i,2,'a')}, v{VVRD} offset:{T*2048+(i>>1)*1024+(i&1)*256}"
def ldK(dst, i):
    return f"buffer_load_dwordx4 {rg(dst+4*i,4)}, v{VROW}, {rg(sK,4,'s')}, s{sKOFF} offen offset:{16*i}"
def dmaV(i):
    return f"buffer_load_dwordx4 v{VLIN}, {rg(sV,4,'s')}, s{sVOFF} offen offset:{1024*i} lds"
def wrK(src, i):
    return f"ds_write_b128 v{VKWR}, {rg(src+4*i,4)} offset:{512*i}"

def norm(groups, isq):
    R = [g + i for g in groups for i in range(4)]
    o = []
    for i in range(16):
        a = RR + (i & 1)
        o.append(f"v_dot2_f32_bf16 v{a}, v{R[i]}, v{R[i]}, " + ("0" if i < 2 else f"v{a}"))
    x = [f"v_mfma_f32_4x4x4_16b_bf16 {rg(TMP+4*i,4)}, {rg(IDENT,2)}, {rg(R[2*i],2)}, 0" for i in range(8)]
    o += [x[0], x[1], x[2], f"v_add_f32 v{RR}, v{RR}, v{RR+1}", x[3], f"v_sqrt_f32 v{RR}, v{RR}", x[4],
          f"v_add_f32 v{RR}, 0x358637bd, v{RR}", x[5], f"v_rcp_f32 v{RR}, v{RR}", x[6]]
    if isq: o += [f"v_mul_f32 v{RR}, v{T2}, v{RR}"]
    o += [x[7]]
    for i in range(16):
        o.append(f"v_pk_mul_f32 {rg(TMP+2*i,2)}, {rg(TMP+2*i,2)}, {rg(RR,2)} op_sel_hi:[1,0]")
    for i in range(16):
        o.append(f"v_cvt_pk_bf16_f32 v{R[i]}, v{TMP+2*i}, v{TMP+2*i+1}")
    return o

def stamp(i):
    return [f"s_memtime {rg(sST+2*i,2,'s')}"] if OPT['stamp'] else []

def unit(T, qt, mode, slotA, slotB, shM0=(), shM1=(), shS1=(), shS0=()):
    nT, nq = (T, qt + 1) if qt < 3 else (T + 1, 0)
    pT, pq = (T, qt - 1) if qt > 0 else (T - 1, 3)
    s = S[qt]
    if mode == 'max':
        mx = [f"v_max3_f32 v{MX[qt]}, v{s+2*i}, v{s+2*i+1}, v{MX[qt]}" for i in range(8)]
        return ([qk(nT, nq, 0)] + list(shM0) + mx[:4] + [qk(nT, nq, 1)] + list(shM1) + mx[4:] + list(shS1) + ["s_nop 0"] + list(slotA)
                + list(shS0) + list(slotB) + ["s_nop 7"])
    def e(i):
        if mode == 'sub': return [f"v_sub_f32 v{s+i}, v{s+i}, v{MX[qt]}", f"v_exp_f32 v{s+i}, v{s+i}"]
        return [f"v_exp_f32 v{s+i}, v{s+i}"]
    E = lambda a, b: [x for i in range(a, b) for x in e(i)]
    return ([qk(nT, nq, 0)] + list(shM0) + E(0, 3) + [qk(nT, nq, 1)] + list(shM1) + E(3, 6)
            + [pv(pT, pq, 1)] + list(shS1) + E(6, 9) + [rs(pT, pq, 1)] + list(slotA) + E(9, 10)
            + [pv(T, qt, 0)] + list(shS0) + E(10, 13) + [rs(T, qt, 0)] + list(slotB) + E(13, 16))

def loop_body(mode, tag):
    pre, blk, post = [], [], []
    cur = pre
    for T in range(8):
        if T == 2:
            pre += ["s_waitcnt vmcnt(4) lgkmcnt(0)", f"s_cbranch_scc1 L{tag}_skip"]
            blk = norm([KRAW, KRAW + 4, KRAW + 8, KRAW + 12], False) + [wrK(KRAW, i) for i in range(4)]
            cur = post
        n = (T + 1) & 7
        for qt in range(4):
            kw = {}
            A, B = [], []
            if qt == 0:
                A, B = [rdK(n, 0)], [rdK(n, 1)]
                if T == 7:
                    kw['shM1'] = ["s_waitcnt vmcnt(4) lgkmcnt(0)"]; kw['shS1'] = ["s_barrier"]
                elif T != 2:
                    kw['shS1'] = ["s_waitcnt lgkmcnt(0)"]
            if qt == 1: A, B = [rdV(n, 0)], [rdV(n, 1)]
            if qt == 2:
                A, B = [rdV(n, 2)], [rdV(n, 3)]
                kw['shS0'] = ["s_waitcnt lgkmcnt(3)"]
            if qt == 3:
                if T == 0:
                    kw['shM0'] = [f"s_xor_b32 s{sM0}, s{sM0}, 0x8000"]
                    kw['shM1'] = [f"s_add_u32 s{sVOFF}, s{sVOFF}, 0x4000"]
                    kw['shS1'] = [f"s_mov_b32 m0, s{sM0}"]
                    A, B = [dmaV(0)], [dmaV(1)]
                if T == 1:
                    A, B = [dmaV(2)], [dmaV(3)]
                    kw['shS0'] = [f"s_cmp_eq_u32 s{sCNT}, 7"]
                if T == 3:
                    kw['shM0'] = [f"s_add_u32 s{sKOFF}, s{sKOFF}, 0x4000"]
                    A, B = [ldK(KRAW, 0)], [ldK(KRAW, 1)]
                if T == 4: A, B = [ldK(KRAW, 2)], [ldK(KRAW, 3)]
                if T == 6:
                    cur += [f"v_xor_b32 v{VKRD}, 0x8000, v{VKRD}", f"v_xor_b32 v{VVRD}, 0x8000, v{VVRD}",
                            f"v_xor_b32 v{VKWR}, 0x8000, v{VKWR}"]
                if T == 7:
                    kw['shS1'] = [f"s_add_u32 s{sCNT}, s{sCNT}, 1"]
                    kw['shS0'] = [f"s_cmp_lg_u32 s{sCNT}, 8"]
            cur += unit(T, qt, mode, A, B, **kw)
    post += [f"s_cbranch_scc1 L{tag}_loop"]
    lines = [".p2align 6", f"L{tag}_loop:"] + pre + blk + [f"L{tag}_skip:"] + post
    return lines, pre + blk + post, pre + post

def stage_init():
    return [f"s_lshl_b32 s{sKOFF}, s{sW}, 12", f"s_mov_b32 s{sVOFF}, s{sKOFF}",
            f"s_add_u32 s{sM0}, s{sKOFF}, 0x4000", f"s_mov_b32 m0, s{sM0}", f"s_mov_b32 s{sCNT}, 0"]

def first_reads():
    o = [rdK(0, 0), rdK(0, 1)] + [rdV(0, i) for i in range(4)]
    o += [f"v_xor_b32 v{VKWR}, 0x8000, v{VKWR}"]
    o += [f"v_mov_b32 v{S[3]+8+i}, 0" for i in range(8)]
    o += [f"v_accvgpr_write_b32 a{VF[1]+4+i}, 0" for i in range(4)]
    o += ["s_waitcnt lgkmcnt(4)", qk(0, 0, 0), qk(0, 0, 1), "s_nop 7", "s_nop 2"]
    return o

def prologue():
    o = ["s_cmp_ge_u32 s2, 256", "s_cbranch_scc1 L_end"]
    o += stamp(0)
    o += ["s_load_dwordx4 s[4:7], s[0:1], 0", "s_load_dwordx4 s[8:11], s[0:1], 16", "s_load_dwordx2 s[12:13], s[0:1], 32"]
    if OPT['stamp']: o += ["s_load_dwordx2 s[14:15], s[0:1], 48"]
    o += [f"v_readfirstlane_b32 s{sW}, v0",
          f"s_and_b32 s{sHEAD}, s2, 7", f"s_lshr_b32 s{sTMP}, s2, 5", f"s_lshl_b32 s{sTMP}, s{sTMP}, 3",
          f"s_or_b32 s{sHEAD}, s{sHEAD}, s{sTMP}", f"s_bfe_u32 s{sQTR}, s2, 0x20003",
          f"s_lshr_b32 s{sW}, s{sW}, 6",
          f"v_and_b32 v{T0}, 63, v0",
          f"v_lshlrev_b32 v{VROW}, 6, v{T0}", f"v_lshlrev_b32 v{VLIN}, 4, v{T0}"]
    o += stage_init()
    o += [f"s_lshl_b32 s{sQ0}, s{sW}, 13", f"s_add_u32 s{sQ1}, s{sQ0}, 0x1000",
          f"s_lshl_b32 s{sTMP}, s{sHEAD}, 17", f"s_lshl_b32 s{sTMP+1}, s{sQTR}, 15", f"s_add_u32 s{sTMP+1}, s{sTMP+1}, s{sTMP}",
          f"s_and_b32 s{sTMP+2}, s{sHEAD}, 30", f"s_lshl_b32 s{sTMP+2}, s{sTMP+2}, 1",
          f"s_mov_b32 s{sK+2}, 0x20000", f"s_mov_b32 s{sK+3}, 0x20000", f"s_mov_b32 s{sV+2}, 0x20000", f"s_mov_b32 s{sV+3}, 0x20000",
          f"s_mov_b32 s{sQ+2}, 0x8000", f"s_mov_b32 s{sQ+3}, 0x20000", f"s_mov_b32 s{sO+2}, 0x8000", f"s_mov_b32 s{sO+3}, 0x20000",
          "s_waitcnt lgkmcnt(0)",
          f"s_load_dword s{sT}, s[10:11], s{sTMP+2}",
          f"s_add_u32 s{sK}, s6, s{sTMP}", f"s_addc_u32 s{sK+1}, s7, 0"]
    o += [ldK(K0RAW, i) for i in range(4)]
    o += [f"s_add_u32 s{sQ}, s4, s{sTMP+1}", f"s_addc_u32 s{sQ+1}, s5, 0"]
    for p in range(2):
        for c4 in range(4):
            o.append(f"buffer_load_dwordx4 {rg(Q[2*p+(c4&1)]+4*(c4>>1),4)}, v{VROW}, {rg(sQ,4,'s')}, s{sQ0+p} offen offset:{16*c4}")
    o += [f"s_add_u32 s{sV}, s8, s{sTMP}", f"s_addc_u32 s{sV+1}, s9, 0"]
    o += [dmaV(i) for i in range(4)]
    o += [f"s_add_u32 s{sKOFF}, s{sKOFF}, 0x4000"]
    o += [ldK(KRAW, i) for i in range(4)]
    o += [f"s_add_u32 s{sO}, s12, s{sTMP+1}", f"s_addc_u32 s{sO+1}, s13, 0"]
    o += [f"v_mov_b32 v{IDX}, 0xdddddddd", f"v_mov_b32 v{VKRD}, v{VLIN}",
          f"v_lshrrev_b32 v{T1}, 5, v0", f"v_lshlrev_b32 v{T1}, 11, v{T1}", f"v_and_b32 v{VKWR}, 31, v0",
          f"v_lshl_add_u32 v{VKWR}, v{VKWR}, 4, v{T1}",
          f"v_and_b32 v{VOUT}, 31, v0", f"v_lshlrev_b32 v{VOUT}, 6, v{VOUT}", f"v_and_b32 v{T1}, 32, v0", f"v_or_b32 v{VOUT}, v{VOUT}, v{T1}",
          f"v_lshlrev_b32 v{VVRD}, 4, v{T1}", f"v_and_b32 v{T1}, 12, v0", f"v_lshl_add_u32 v{VVRD}, v{T1}, 4, v{VVRD}",
          f"v_and_b32 v{T1}, 1, v0", f"v_lshl_add_u32 v{VVRD}, v{T1}, 5, v{VVRD}",
          f"v_and_b32 v{T1}, 16, v0", f"v_add_u32 v{VVRD}, v{VVRD}, v{T1}",
          f"v_and_b32 v{T1}, 2, v0", f"v_lshl_add_u32 v{VVRD}, v{T1}, 2, v{VVRD}",
          f"v_add_u32 v{VVRD}, 0x4000, v{VVRD}",
          f"v_and_b32 v{T1}, 1, v0", f"v_lshlrev_b32 v{T1}, 4, v{T1}", f"v_mov_b32 v{T2}, 0x3f80", f"v_lshlrev_b32 v{T2}, v{T1}, v{T2}",
          f"v_and_b32 v{T1}, 2, v0", f"v_cmp_eq_u32 vcc, 0, v{T1}", "s_nop 1",
          f"v_cndmask_b32 v{IDENT}, 0, v{T2}, vcc", f"v_cndmask_b32 v{IDENT+1}, v{T2}, 0, vcc",
          f"v_mov_b32 v{T2}, 0x3f803f80", f"v_and_b32 v{T1}, 7, v0", f"v_cmp_eq_u32 vcc, 0, v{T1}", "s_nop 1",
          f"v_cndmask_b32 v{ONES}, 0, v{T2}, vcc", f"v_cndmask_b32 v{ONES+1}, 0, v{T2}, vcc",
          f"v_cmp_eq_u32 vcc, 4, v{T1}", "s_nop 1",
          f"v_cndmask_b32 v{ONES+2}, 0, v{T2}, vcc", f"v_cndmask_b32 v{ONES+3}, 0, v{T2}, vcc"]
    o += [f"v_mov_b32 v{O[0]+i}, 0" for i in range(64)] + [f"v_mov_b32 v{L[0]+i}, 0" for i in range(16)]
    o += ["s_waitcnt lgkmcnt(0)", f"s_and_b32 s{sTMP}, s{sHEAD}, 1", f"s_lshl_b32 s{sTMP}, s{sTMP}, 4",
          f"s_lshr_b32 s{sT}, s{sT}, s{sTMP}", f"s_lshl_b32 s{sT}, s{sT}, 16",
          f"v_mov_b32 v{T2}, 0x3fb8aa3b", f"v_mul_f32 v{T2}, s{sT}, v{T2}"]
    o += stamp(1)
    o += ["s_waitcnt vmcnt(16)"] + stamp(2)
    o += norm([K0RAW, K0RAW + 4, K0RAW + 8, K0RAW + 12], False) + [wrK(K0RAW, i) for i in range(4)]
    for p in range(2):
        o += [f"s_waitcnt vmcnt({12-4*p})"]
        o += norm([Q[2*p], Q[2*p+1], Q[2*p] + 4, Q[2*p+1] + 4], True)
        o += ["s_nop 1"]
        o += [f"v_permlane32_swap_b32 v{Q[2*p]+i}, v{Q[2*p+1]+i}" for i in range(8)]
    o += stamp(3)
    o += ["s_waitcnt vmcnt(4) lgkmcnt(0)", "s_barrier"]
    o += first_reads()
    o += stamp(4)
    o += [f"s_and_b32 s{sTMP}, s{sT}, 0x7fffffff", f"s_cmp_gt_u32 s{sTMP}, " + ("0" if OPT['force_slow'] else "0x41300000"), "s_cbranch_scc1 L_slow"]
    return o

def tail():
    return [pv(7, 3, 1), rs(7, 3, 1)]

def epilogue():
    o = stamp(5)
    for qt in range(4):
        if qt == 0: o += ["s_nop 1"]
        o += [f"v_rcp_f32 v{RR}, v{L[qt]}", "s_nop 0"]
        o += [f"v_pk_mul_f32 {rg(O[qt]+2*i,2)}, {rg(O[qt]+2*i,2)}, {rg(RR,2)} op_sel_hi:[1,0]" for i in range(8)]
        o += [f"v_cvt_pk_bf16_f32 v{TMP+8*qt+i}, v{O[qt]+2*i}, v{O[qt]+2*i+1}" for i in range(8)]
        for j in range(2):
            o.append(f"buffer_store_dwordx4 {rg(TMP+8*qt+4*j,4)}, v{VOUT}, {rg(sO,4,'s')}, s{sQ0+(qt>>1)} offen offset:{(qt&1)*2048+16*j}")
    if OPT['stamp']:
        o += stamp(6) + ["s_waitcnt vmcnt(0)"] + stamp(7) + [f"s_memrealtime {rg(sST+16,2,'s')}", "s_waitcnt lgkmcnt(0)"]
        o += ["s_mov_b32 s4, s14", "s_mov_b32 s5, s15", "s_mov_b32 s6, 0x100000", "s_mov_b32 s7, 0x20000",
              f"s_lshl_b32 s8, s2, 2", f"s_add_u32 s8, s8, s{sW}", "s_lshl_b32 s8, s8, 6", "v_mov_b32 v1, 0"]
        for i in range(9):
            o += [f"v_mov_b32 v2, s{sST+2*i}", f"buffer_store_dword v2, v1, s[4:7], s8 offen offset:{4*i}"]
    return o

def slow_pre():
    return [f"v_mov_b32 v{MX[i]}, 0xff800000" for i in range(4)]

def slow_mid():
    o = ["s_waitcnt vmcnt(0) lgkmcnt(0)", "s_barrier"]
    for i in range(4):
        o += [f"v_mov_b32 v{T0}, v{MX[i]}", f"v_mov_b32 v{T1}, v{MX[i]}", "s_nop 1", f"v_permlane32_swap_b32 v{T0}, v{T1}", "s_nop 1",
              f"v_max_f32 v{MX[i]}, v{T0}, v{T1}"]
    o += stage_init() + [f"v_xor_b32 v{VKWR}, 0x8000, v{VKWR}", "s_nop 7", "s_nop 7"]
    o += [ldK(K0RAW, i) for i in range(4)] + [dmaV(i) for i in range(4)]
    o += [f"s_add_u32 s{sKOFF}, s{sKOFF}, 0x4000"] + [ldK(KRAW, i) for i in range(4)]
    o += ["s_waitcnt vmcnt(8)"]
    o += norm([K0RAW, K0RAW + 4, K0RAW + 8, K0RAW + 12], False) + [wrK(K0RAW, i) for i in range(4)]
    o += ["s_waitcnt vmcnt(4) lgkmcnt(0)", "s_barrier"] + first_reads()
    return o

pro = prologue()
fl, fa, fb = loop_body('fast', 'f')
ml, ma, mb = loop_body('max', 'm')
sl, sa, sb = loop_body('sub', 's')
ta, ep = tail(), epilogue()
probs = []
probs += check_path(pro + fa + fa + fb + ["s_nop 1"] + ta + ep, "fast")
probs += check_path(pro + slow_pre() + ma + ma + mb + slow_mid() + sa + sa + sb + ["s_nop 1"] + ta + ep, "slow")
if probs:
    print("\n".join(probs[:40])); raise SystemExit("hazards found")

body = pro + fl + ["L_tail:", "s_nop 1"] + ta + ep + ["L_end:", "s_endpgm", "L_slow:"] + slow_pre() + ml + slow_mid() + sl + ["s_branch L_tail"]
hdr = open("cdna_kernels/" + NAME + ".s.ref").read().split("; Override launch")[0]
out = hdr + f"""; Cosine-similarity attention, one workgroup per (head, 512 queries), one wave per SIMD (128 queries).
; S^T = Kn Qn^T on the dense bf16 MFMA, exp2 in place, O^T += V^T P^T and the row sums on the sparse MFMA
; (its index picks the high halves of the fp32 P registers).  |t| <= 11 bounds every logit, so the
; max subtraction is skipped; any other t takes the true-max path (L_slow).
; @launch grid=(256,1,1) block=(256,1,1) lds=65536
.amdgcn_target "amdgcn-amd-amdhsa--gfx950"
.text
.globl {NAME}_kernel
.p2align 8
.type {NAME}_kernel,@function
{NAME}_kernel:
""" + "\n".join(x if x.endswith(":") or x.startswith(".") else "    " + x for x in body) + f"""
.section .rodata,"a"
.p2align 6
.amdhsa_kernel {NAME}_kernel
  .amdhsa_next_free_vgpr 288
  .amdhsa_next_free_sgpr 96
  .amdhsa_accum_offset 256
  .amdhsa_group_segment_fixed_size 0
  .amdhsa_kernarg_size 56
  .amdhsa_user_sgpr_count 2
  .amdhsa_user_sgpr_kernarg_segment_ptr 1
  .amdhsa_system_sgpr_workgroup_id_x 1
  .amdhsa_float_denorm_mode_32 3
.end_amdhsa_kernel
"""
open(sys.argv[1], "w").write(out)
print("wrote", sys.argv[1], len(body), "lines")
```

```python
import sys
from asmlib import rg, check_path

NAME = "standalone__qk_norm__prompt"
OPT = dict(stamp=False, force_slow=False, lstamp=-1, pstamp=False, dbg=False)
for a in sys.argv[2:]:
    k, v = a.split("="); OPT[k] = eval(v)

S = [0, 16, 32, 48]
O = [64, 80, 96, 112]
Q = [128, 136, 144, 152]
TMP = 160
KRAW = 192
L = [208, 212, 216, 220]
IDX, VKRD, VVRD, VKWR, VROW, VLIN = 224, 225, 226, 227, 228, 229
IDENT = 230
ONES = 232
RR = 236
MX = [240, 241, 242, 243]
VOUT = 244
T0, T1, T2 = 245, 246, 247
KF = [0, 8]
VF = [16, 24]
K0RAW = 16
sQ, sK, sV, sO = 16, 20, 24, 28
sW, sHEAD, sQTR, sT, sCNT, sKOFF, sVOFF, sM0, sQ0, sQ1, sTMP = 32, 33, 34, 35, 36, 37, 38, 39, 40, 41, 42
sST = 48

def qk(T, qt, m):
    c = "0" if m == 0 else rg(S[qt], 16)
    return f"v_mfma_f32_32x32x16_bf16 {rg(S[qt],16)}, {rg(KF[T&1]+4*m,4,'a')}, {rg(Q[qt]+4*m,4)}, {c}"
def pv(T, qt, m):
    return f"v_smfmac_f32_32x32x32_bf16 {rg(O[qt],16)}, {rg(VF[T&1]+4*m,4,'a')}, {rg(S[qt]+8*m,8)}, v{IDX}"
def rs(T, qt, m):
    return f"v_smfmac_f32_16x16x64_bf16 {rg(L[qt],4)}, {rg(ONES,4)}, {rg(S[qt]+8*m,8)}, v{IDX}"
def rdK(T, m):
    return f"ds_read_b128 {rg(KF[T&1]+4*m,4,'a')}, v{VKRD} offset:{T*2048+m*1024}"
def rdV(T, i):
    return f"ds_read_b64_tr_b16 {rg(VF[T&1]+2*i,2,'a')}, v{VVRD} offset:{T*2048+(i>>1)*1024+(i&1)*256}"
def ldK(dst, i):
    return f"buffer_load_dwordx4 {rg(dst+4*i,4)}, v{VROW}, {rg(sK,4,'s')}, s{sKOFF} offen offset:{16*i}"
def dmaV(i):
    return f"buffer_load_dwordx4 v{VLIN}, {rg(sV,4,'s')}, s{sVOFF} offen offset:{1024*i} lds"
def wrK(src, i):
    return f"ds_write_b128 v{VKWR}, {rg(src+4*i,4)} offset:{512*i}"

def norm(groups, isq):
    R = [g + i for g in groups for i in range(4)]
    o = []
    for i in range(16):
        a = RR + (i & 1)
        o.append(f"v_dot2_f32_bf16 v{a}, v{R[i]}, v{R[i]}, " + ("0" if i < 2 else f"v{a}"))
    x = [f"v_mfma_f32_4x4x4_16b_bf16 {rg(TMP+4*i,4)}, {rg(IDENT,2)}, {rg(R[2*i],2)}, 0" for i in range(8)]
    o += [x[0], x[1], x[2], f"v_add_f32 v{RR}, v{RR}, v{RR+1}", x[3], f"v_sqrt_f32 v{RR}, v{RR}", x[4],
          f"v_add_f32 v{RR}, 0x358637bd, v{RR}", x[5], f"v_rcp_f32 v{RR}, v{RR}", x[6]]
    if isq: o += [f"v_mul_f32 v{RR}, v{T2}, v{RR}"]
    o += [x[7]]
    for i in range(16):
        o.append(f"v_pk_mul_f32 {rg(TMP+2*i,2)}, {rg(TMP+2*i,2)}, {rg(RR,2)} op_sel_hi:[1,0]")
    for i in range(16):
        o.append(f"v_cvt_pk_bf16_f32 v{R[i]}, v{TMP+2*i}, v{TMP+2*i+1}")
    return o

def pst(i):
    return [f"s_memtime {rg(sST+2*i,2,'s')}"] if OPT['pstamp'] else []
def stamp(i):
    if OPT['pstamp'] and 0 < i < 7: return []
    return [f"s_memtime {rg(sST+2*i,2,'s')}"] if OPT['stamp'] and OPT['lstamp'] < 0 else []

def unit(T, qt, mode, slotA, slotB, shM0=(), shM1=(), shS1=(), shS0=()):
    nT, nq = (T, qt + 1) if qt < 3 else (T + 1, 0)
    pT, pq = (T, qt - 1) if qt > 0 else (T - 1, 3)
    s = S[qt]
    if mode == 'max':
        mx = [f"v_max3_f32 v{MX[qt]}, v{s+2*i}, v{s+2*i+1}, v{MX[qt]}" for i in range(8)]
        return ([qk(nT, nq, 0)] + list(shM0) + mx[:4] + [qk(nT, nq, 1)] + list(shM1) + mx[4:] + list(shS1) + ["s_nop 0"] + list(slotA)
                + list(shS0) + list(slotB) + ["s_nop 7"])
    def e(i):
        if mode == 'sub': return [f"v_sub_f32 v{s+i}, v{s+i}, v{MX[qt]}", f"v_exp_f32 v{s+i}, v{s+i}"]
        return [f"v_exp_f32 v{s+i}, v{s+i}"]
    E = lambda a, b: [x for i in range(a, b) for x in e(i)]
    return ([qk(nT, nq, 0)] + list(shM0) + E(0, 3) + [qk(nT, nq, 1)] + list(shM1) + E(3, 6)
            + [pv(pT, pq, 1)] + list(shS1) + E(6, 9) + [rs(pT, pq, 1)] + list(slotA) + E(9, 10)
            + [pv(T, qt, 0)] + list(shS0) + E(10, 13) + [rs(T, qt, 0)] + list(slotB) + E(13, 16))

def loop_body(mode, tag):
    pre, blk, post = [], [], []
    cur = pre
    for T in range(8):
        if T == 2:
            pre += ["s_waitcnt vmcnt(4) lgkmcnt(0)", f"s_cbranch_scc1 L{tag}_skip"]
            blk = norm([KRAW, KRAW + 4, KRAW + 8, KRAW + 12], False) + [wrK(KRAW, i) for i in range(4)]
            cur = post
        n = (T + 1) & 7
        for qt in range(4):
            kw = {}
            A, B = [], []
            if qt == 0:
                A, B = [rdK(n, 0)], [rdK(n, 1)]
                if T == 7:
                    kw['shM1'] = ["s_waitcnt vmcnt(4) lgkmcnt(0)"]; kw['shS1'] = ["s_barrier"]
                elif T != 2:
                    kw['shS1'] = ["s_waitcnt lgkmcnt(0)"]
            if qt == 1: A, B = [rdV(n, 0)], [rdV(n, 1)]
            if qt == 2:
                A, B = [rdV(n, 2)], [rdV(n, 3)]
                kw['shS0'] = ["s_waitcnt lgkmcnt(3)"]
            if qt == 3:
                if T == 0:
                    kw['shM0'] = [f"s_xor_b32 s{sM0}, s{sM0}, 0x8000"]
                    kw['shM1'] = [f"s_add_u32 s{sVOFF}, s{sVOFF}, 0x4000"]
                    kw['shS1'] = [f"s_mov_b32 m0, s{sM0}"]
                    A, B = [dmaV(0)], [dmaV(1)]
                if T == 1:
                    A, B = [dmaV(2)], [dmaV(3)]
                    kw['shS0'] = [f"s_cmp_eq_u32 s{sCNT}, 7"]
                if T == 3:
                    kw['shM0'] = [f"s_add_u32 s{sKOFF}, s{sKOFF}, 0x4000"]
                    A, B = [ldK(KRAW, 0)], [ldK(KRAW, 1)]
                if T == 4: A, B = [ldK(KRAW, 2)], [ldK(KRAW, 3)]
                if T == 6:
                    cur += [f"v_xor_b32 v{VKRD}, 0x8000, v{VKRD}", f"v_xor_b32 v{VVRD}, 0x8000, v{VVRD}",
                            f"v_xor_b32 v{VKWR}, 0x8000, v{VKWR}"]
                if T == 7:
                    kw['shS1'] = [f"s_add_u32 s{sCNT}, s{sCNT}, 1"]
                    kw['shS0'] = [f"s_cmp_lg_u32 s{sCNT}, 8"]
            if OPT['lstamp'] >= 0 and qt == 0 and mode == 'fast':
                kw['shM0'] = [f"s_memtime {rg(72+2*T,2,'s')}"]
            if OPT['lstamp'] >= 0 and qt == 2 and T == 7 and mode == 'fast':
                cur += [f"s_cmp_eq_u32 s{sCNT}, {OPT['lstamp']}"] + [f"s_cmov_b64 {rg(sST+2*i,2,'s')}, {rg(72+2*i,2,'s')}" for i in range(8)]
            cur += unit(T, qt, mode, A, B, **kw)
    post += [f"s_cbranch_scc1 L{tag}_loop"]
    lines = [".p2align 6", f"L{tag}_loop:"] + pre + blk + [f"L{tag}_skip:"] + post
    return lines, pre + blk + post, pre + post

def stage_init():
    return [f"s_lshl_b32 s{sKOFF}, s{sW}, 12", f"s_mov_b32 s{sVOFF}, s{sKOFF}",
            f"s_add_u32 s{sM0}, s{sKOFF}, 0x4000", f"s_mov_b32 m0, s{sM0}", f"s_mov_b32 s{sCNT}, 0"]

def first_reads():
    o = [rdK(0, 0), rdK(0, 1)] + [rdV(0, i) for i in range(4)]
    o += [f"v_xor_b32 v{VKWR}, 0x8000, v{VKWR}"]
    o += [f"v_mov_b32 v{S[3]+8+i}, 0" for i in range(8)]
    o += [f"v_accvgpr_write_b32 a{VF[1]+4+i}, 0" for i in range(4)]
    o += ["s_waitcnt lgkmcnt(4)", qk(0, 0, 0), qk(0, 0, 1), "s_nop 7", "s_nop 2"]
    return o

def prologue():
    o = ["s_cmp_ge_u32 s2, 256", "s_cbranch_scc1 L_end"]
    o += stamp(0)
    if OPT['stamp']: o += [f"s_memrealtime {rg(sST+18,2,'s')}"]
    o += ["s_load_dwordx4 s[4:7], s[0:1], 0", "s_load_dwordx4 s[8:11], s[0:1], 16", "s_load_dwordx2 s[12:13], s[0:1], 32"]
    if OPT['stamp']: o += ["s_load_dwordx2 s[14:15], s[0:1], " + ("40" if OPT['dbg'] else "48")]
    o += [f"v_readfirstlane_b32 s{sW}, v0",
          f"s_and_b32 s{sHEAD}, s2, 7", f"s_lshr_b32 s{sTMP}, s2, 5", f"s_lshl_b32 s{sTMP}, s{sTMP}, 3",
          f"s_or_b32 s{sHEAD}, s{sHEAD}, s{sTMP}", f"s_bfe_u32 s{sQTR}, s2, 0x20003",
          f"s_lshr_b32 s{sW}, s{sW}, 6",
          f"v_and_b32 v{T0}, 63, v0",
          f"v_lshlrev_b32 v{VROW}, 6, v{T0}", f"v_lshlrev_b32 v{VLIN}, 4, v{T0}"]
    o += stage_init()
    o += [f"s_lshl_b32 s{sQ0}, s{sW}, 13", f"s_add_u32 s{sQ1}, s{sQ0}, 0x1000",
          f"s_lshl_b32 s{sTMP}, s{sHEAD}, 17", f"s_lshl_b32 s{sTMP+1}, s{sQTR}, 15", f"s_add_u32 s{sTMP+1}, s{sTMP+1}, s{sTMP}",
          f"s_and_b32 s{sTMP+2}, s{sHEAD}, 30", f"s_lshl_b32 s{sTMP+2}, s{sTMP+2}, 1",
          f"s_mov_b32 s{sK+2}, 0x20000", f"s_mov_b32 s{sK+3}, 0x20000", f"s_mov_b32 s{sV+2}, 0x20000", f"s_mov_b32 s{sV+3}, 0x20000",
          f"s_mov_b32 s{sQ+2}, 0x8000", f"s_mov_b32 s{sQ+3}, 0x20000", f"s_mov_b32 s{sO+2}, 0x8000", f"s_mov_b32 s{sO+3}, 0x20000",
          ] + pst(1) + ["s_waitcnt lgkmcnt(0)"] + pst(2) + [
          f"s_load_dword s{sT}, s[10:11], s{sTMP+2}",
          f"s_add_u32 s{sK}, s6, s{sTMP}", f"s_addc_u32 s{sK+1}, s7, 0"]
    o += [ldK(K0RAW, i) for i in range(4)]
    o += pst(3) + [f"s_add_u32 s{sQ}, s4, s{sTMP+1}", f"s_addc_u32 s{sQ+1}, s5, 0"]
    for p in range(2):
        for c4 in range(4):
            o.append(f"buffer_load_dwordx4 {rg(Q[2*p+(c4&1)]+4*(c4>>1),4)}, v{VROW}, {rg(sQ,4,'s')}, s{sQ0+p} offen offset:{16*c4}")
    o += [f"s_add_u32 s{sV}, s8, s{sTMP}", f"s_addc_u32 s{sV+1}, s9, 0"]
    o += [dmaV(i) for i in range(4)]
    o += [f"s_add_u32 s{sKOFF}, s{sKOFF}, 0x4000"]
    o += [ldK(KRAW, i) for i in range(4)]
    o += [f"s_add_u32 s{sO}, s12, s{sTMP+1}", f"s_addc_u32 s{sO+1}, s13, 0"]
    o += pst(4)
    o += [f"v_mov_b32 v{IDX}, 0xdddddddd", f"v_mov_b32 v{VKRD}, v{VLIN}",
          f"v_lshrrev_b32 v{T1}, 5, v0", f"v_lshlrev_b32 v{T1}, 11, v{T1}", f"v_and_b32 v{VKWR}, 31, v0",
          f"v_lshl_add_u32 v{VKWR}, v{VKWR}, 4, v{T1}",
          f"v_and_b32 v{VOUT}, 31, v0", f"v_lshlrev_b32 v{VOUT}, 6, v{VOUT}", f"v_and_b32 v{T1}, 32, v0", f"v_or_b32 v{VOUT}, v{VOUT}, v{T1}",
          f"v_lshlrev_b32 v{VVRD}, 4, v{T1}", f"v_and_b32 v{T1}, 12, v0", f"v_lshl_add_u32 v{VVRD}, v{T1}, 4, v{VVRD}",
          f"v_and_b32 v{T1}, 1, v0", f"v_lshl_add_u32 v{VVRD}, v{T1}, 5, v{VVRD}",
          f"v_and_b32 v{T1}, 16, v0", f"v_add_u32 v{VVRD}, v{VVRD}, v{T1}",
          f"v_and_b32 v{T1}, 2, v0", f"v_lshl_add_u32 v{VVRD}, v{T1}, 2, v{VVRD}",
          f"v_add_u32 v{VVRD}, 0x4000, v{VVRD}",
          f"v_and_b32 v{T1}, 1, v0", f"v_lshlrev_b32 v{T1}, 4, v{T1}", f"v_mov_b32 v{T2}, 0x3f80", f"v_lshlrev_b32 v{T2}, v{T1}, v{T2}",
          f"v_and_b32 v{T1}, 2, v0", f"v_cmp_eq_u32 vcc, 0, v{T1}", "s_nop 1",
          f"v_cndmask_b32 v{IDENT}, 0, v{T2}, vcc", f"v_cndmask_b32 v{IDENT+1}, v{T2}, 0, vcc",
          f"v_mov_b32 v{T2}, 0x3f803f80", f"v_and_b32 v{T1}, 7, v0", f"v_cmp_eq_u32 vcc, 0, v{T1}", "s_nop 1",
          f"v_cndmask_b32 v{ONES}, 0, v{T2}, vcc", f"v_cndmask_b32 v{ONES+1}, 0, v{T2}, vcc",
          f"v_cmp_eq_u32 vcc, 4, v{T1}", "s_nop 1",
          f"v_cndmask_b32 v{ONES+2}, 0, v{T2}, vcc", f"v_cndmask_b32 v{ONES+3}, 0, v{T2}, vcc"]
    o += [f"v_mov_b32 v{O[0]+i}, 0" for i in range(64)] + [f"v_mov_b32 v{L[0]+i}, 0" for i in range(16)]
    o += pst(5) + ["s_waitcnt lgkmcnt(0)"] + pst(6) + [f"s_and_b32 s{sTMP}, s{sHEAD}, 1", f"s_lshl_b32 s{sTMP}, s{sTMP}, 4",
          f"s_lshr_b32 s{sT}, s{sT}, s{sTMP}", f"s_lshl_b32 s{sT}, s{sT}, 16",
          f"v_mov_b32 v{T2}, 0x3fb8aa3b", f"v_mul_f32 v{T2}, s{sT}, v{T2}"]
    o += stamp(1)
    o += ["s_waitcnt vmcnt(16)"] + stamp(2)
    o += norm([K0RAW, K0RAW + 4, K0RAW + 8, K0RAW + 12], False) + [wrK(K0RAW, i) for i in range(4)]
    for p in range(2):
        o += [f"s_waitcnt vmcnt({12-4*p})"]
        o += norm([Q[2*p], Q[2*p+1], Q[2*p] + 4, Q[2*p+1] + 4], True)
        o += ["s_nop 1"]
        o += [f"v_permlane32_swap_b32 v{Q[2*p]+i}, v{Q[2*p+1]+i}" for i in range(8)]
    o += stamp(3)
    o += ["s_waitcnt vmcnt(4) lgkmcnt(0)", "s_barrier"]
    o += first_reads()
    o += stamp(4)
    o += [f"s_and_b32 s{sTMP}, s{sT}, 0x7fffffff", f"s_cmp_gt_u32 s{sTMP}, " + ("0" if OPT['force_slow'] else "0x41300000"), "s_cbranch_scc1 L_slow"]
    return o

def tail():
    return [pv(7, 3, 1), rs(7, 3, 1)]

def epilogue():
    o = stamp(5)
    for qt in range(4):
        if qt == 0: o += ["s_nop 1"]
        o += [f"v_rcp_f32 v{RR}, v{L[qt]}", "s_nop 0"]
        o += [f"v_pk_mul_f32 {rg(O[qt]+2*i,2)}, {rg(O[qt]+2*i,2)}, {rg(RR,2)} op_sel_hi:[1,0]" for i in range(8)]
        o += [f"v_cvt_pk_bf16_f32 v{TMP+8*qt+i}, v{O[qt]+2*i}, v{O[qt]+2*i+1}" for i in range(8)]
        for j in range(2):
            o.append(f"buffer_store_dwordx4 {rg(TMP+8*qt+4*j,4)}, v{VOUT}, {rg(sO,4,'s')}, s{sQ0+(qt>>1)} offen offset:{(qt&1)*2048+16*j}")
    if OPT['stamp']:
        o += stamp(6) + ["s_waitcnt vmcnt(0)"] + stamp(7) + [f"s_memrealtime {rg(sST+16,2,'s')}", "s_waitcnt lgkmcnt(0)"]
        if OPT['dbg']:
            o += ["s_mov_b32 s4, s14", "s_mov_b32 s5, s15", "s_mov_b32 s6, 0x100", "s_mov_b32 s7, 0x20000", "v_mov_b32 v1, 0", "s_mov_b64 exec, 1"]
            for i in range(1, 8):
                o += [f"s_sub_u32 s8, s{sST+2*i}, s{sST}", "v_mov_b32 v2, s8", f"buffer_atomic_umax v2, v1, s[4:7], 0 offen offset:{4*i}"]
            o += [f"v_mov_b32 v2, s{sST+16}", "buffer_atomic_umax v2, v1, s[4:7], 0 offen offset:32",
                  f"s_not_b32 s8, s{sST+18}", "v_mov_b32 v2, s8", "buffer_atomic_umax v2, v1, s[4:7], 0 offen offset:36",
                  f"v_mov_b32 v2, s{sST+18}", "buffer_atomic_umax v2, v1, s[4:7], 0 offen offset:40",
                  f"s_not_b32 s8, s{sST+16}", "v_mov_b32 v2, s8", "buffer_atomic_umax v2, v1, s[4:7], 0 offen offset:44"]
            return o
        o += ["s_mov_b32 s4, s14", "s_mov_b32 s5, s15", "s_mov_b32 s6, 0x100000", "s_mov_b32 s7, 0x20000",
              f"s_lshl_b32 s8, s2, 2", f"s_add_u32 s8, s8, s{sW}", "s_lshl_b32 s8, s8, 6", "v_mov_b32 v1, 0"]
        for i in range(10):
            o += [f"v_mov_b32 v2, s{sST+2*i}", f"buffer_store_dword v2, v1, s[4:7], s8 offen offset:{4*i}"]
    return o

def slow_pre():
    return [f"v_mov_b32 v{MX[i]}, 0xff800000" for i in range(4)]

def slow_mid():
    o = ["s_waitcnt vmcnt(0) lgkmcnt(0)", "s_barrier"]
    for i in range(4):
        o += [f"v_mov_b32 v{T0}, v{MX[i]}", f"v_mov_b32 v{T1}, v{MX[i]}", "s_nop 1", f"v_permlane32_swap_b32 v{T0}, v{T1}", "s_nop 1",
              f"v_max_f32 v{MX[i]}, v{T0}, v{T1}"]
    o += stage_init() + [f"v_xor_b32 v{VKWR}, 0x8000, v{VKWR}", "s_nop 7", "s_nop 7"]
    o += [ldK(K0RAW, i) for i in range(4)] + [dmaV(i) for i in range(4)]
    o += [f"s_add_u32 s{sKOFF}, s{sKOFF}, 0x4000"] + [ldK(KRAW, i) for i in range(4)]
    o += ["s_waitcnt vmcnt(8)"]
    o += norm([K0RAW, K0RAW + 4, K0RAW + 8, K0RAW + 12], False) + [wrK(K0RAW, i) for i in range(4)]
    o += ["s_waitcnt vmcnt(4) lgkmcnt(0)", "s_barrier"] + first_reads()
    return o

pro = prologue()
fl, fa, fb = loop_body('fast', 'f')
ml, ma, mb = loop_body('max', 'm')
sl, sa, sb = loop_body('sub', 's')
ta, ep = tail(), epilogue()
probs = []
probs += check_path(pro + fa + fa + fb + ["s_nop 1"] + ta + ep, "fast")
probs += check_path(pro + slow_pre() + ma + ma + mb + slow_mid() + sa + sa + sb + ["s_nop 1"] + ta + ep, "slow")
if probs:
    print("\n".join(probs[:40])); raise SystemExit("hazards found")

body = pro + fl + ["L_tail:", "s_nop 1"] + ta + ep + ["L_end:", "s_endpgm", "L_slow:"] + slow_pre() + ml + slow_mid() + sl + ["s_branch L_tail"]
hdr = open("cdna_kernels/" + NAME + ".s.ref").read().split("; Override launch")[0]
out = hdr + f"""; Cosine-similarity attention, one workgroup per (head, 512 queries), one wave per SIMD (128 queries).
; S^T = Kn Qn^T on the dense bf16 MFMA, exp2 in place, O^T += V^T P^T and the row sums on the sparse MFMA
; (its index picks the high halves of the fp32 P registers).  |t| <= 11 bounds every logit, so the
; max subtraction is skipped; any other t takes the true-max path (L_slow).
; @launch grid=(256,1,1) block=(256,1,1) lds=65536
.amdgcn_target "amdgcn-amd-amdhsa--gfx950"
.text
.globl {NAME}_kernel
.p2align 8
.type {NAME}_kernel,@function
{NAME}_kernel:
""" + "\n".join(x if x.endswith(":") or x.startswith(".") else "    " + x for x in body) + f"""
.section .rodata,"a"
.p2align 6
.amdhsa_kernel {NAME}_kernel
  .amdhsa_next_free_vgpr 288
  .amdhsa_next_free_sgpr 96
  .amdhsa_accum_offset 256
  .amdhsa_group_segment_fixed_size 0
  .amdhsa_kernarg_size 56
  .amdhsa_user_sgpr_count 2
  .amdhsa_user_sgpr_kernarg_segment_ptr 1
  .amdhsa_system_sgpr_workgroup_id_x 1
  .amdhsa_float_denorm_mode_32 3
.end_amdhsa_kernel
"""
open(sys.argv[1], "w").write(out)
print("wrote", sys.argv[1], len(body), "lines")
```

```python
import sys
from asmlib import rg, check_path

NAME = "standalone__qk_norm__prompt"
OPT = dict(stamp=False, force_slow=False, lstamp=-1, pstamp=False, dbg=False, nt=True, swap16=True, pref=True, owarm=True, spacew=True)
for a in sys.argv[2:]:
    k, v = a.split("="); OPT[k] = eval(v)

S = [0, 16, 32, 48]
O = [64, 80, 96, 112]
Q = [128, 136, 144, 152]
TMP = 160
KRAW = 192
L = [208, 212, 216, 220]
IDX, VKRD, VVRD, VKWR, VROW, VLIN = 224, 225, 226, 227, 228, 229
IDENT = 230
ONES = 232
RR = 236
MX = [240, 241, 242, 243]
VOUT = 244
T0, T1, T2 = 245, 246, 247
KF = [0, 8]
VF = [16, 24]
K0RAW = 16
sQ, sK, sV, sO = 16, 20, 24, 28
sW, sHEAD, sQTR, sT, sCNT, sKOFF, sVOFF, sM0, sQ0, sQ1, sTMP = 32, 33, 34, 35, 36, 37, 38, 39, 40, 41, 42
sST = 48

def qk(T, qt, m):
    c = "0" if m == 0 else rg(S[qt], 16)
    return f"v_mfma_f32_32x32x16_bf16 {rg(S[qt],16)}, {rg(KF[T&1]+4*m,4,'a')}, {rg(Q[qt]+4*m,4)}, {c}"
def pv(T, qt, m):
    return f"v_smfmac_f32_32x32x32_bf16 {rg(O[qt],16)}, {rg(VF[T&1]+4*m,4,'a')}, {rg(S[qt]+8*m,8)}, v{IDX}"
def rs(T, qt, m):
    return f"v_smfmac_f32_16x16x64_bf16 {rg(L[qt],4)}, {rg(ONES,4)}, {rg(S[qt]+8*m,8)}, v{IDX}"
def rdK(T, m):
    return f"ds_read_b128 {rg(KF[T&1]+4*m,4,'a')}, v{VKRD} offset:{T*2048+m*1024}"
def rdV(T, i):
    return f"ds_read_b64_tr_b16 {rg(VF[T&1]+2*i,2,'a')}, v{VVRD} offset:{T*2048+(i>>1)*1024+(i&1)*256}"
def ldK(dst, i):
    return f"buffer_load_dwordx4 {rg(dst+4*i,4)}, v{VROW}, {rg(sK,4,'s')}, s{sKOFF} offen offset:{16*i}"
def dmaV(i):
    return f"buffer_load_dwordx4 v{VLIN}, {rg(sV,4,'s')}, s{sVOFF} offen offset:{1024*i} lds"
def wrK(src, i):
    return f"ds_write_b128 v{VKWR}, {rg(src+4*i,4)} offset:{512*i}"

def norm(groups, isq):
    R = [g + i for g in groups for i in range(4)]
    o = []
    for i in range(16):
        a = RR + (i & 1)
        o.append(f"v_dot2_f32_bf16 v{a}, v{R[i]}, v{R[i]}, " + ("0" if i < 2 else f"v{a}"))
    x = [f"v_mfma_f32_4x4x4_16b_bf16 {rg(TMP+4*i,4)}, {rg(IDENT,2)}, {rg(R[2*i],2)}, 0" for i in range(8)]
    o += [x[0], x[1], x[2], f"v_add_f32 v{RR}, v{RR}, v{RR+1}", x[3], f"v_sqrt_f32 v{RR}, v{RR}", x[4],
          f"v_add_f32 v{RR}, 0x358637bd, v{RR}", x[5], f"v_rcp_f32 v{RR}, v{RR}", x[6]]
    if isq: o += [f"v_mul_f32 v{RR}, v{T2}, v{RR}"]
    o += [x[7]]
    for i in range(16):
        o.append(f"v_pk_mul_f32 {rg(TMP+2*i,2)}, {rg(TMP+2*i,2)}, {rg(RR,2)} op_sel_hi:[1,0]")
    for i in range(16):
        o.append(f"v_cvt_pk_bf16_f32 v{R[i]}, v{TMP+2*i}, v{TMP+2*i+1}")
    return o

def pst(i):
    return [f"s_memtime {rg(sST+2*i,2,'s')}"] if OPT['pstamp'] else []
def stamp(i):
    if OPT['pstamp'] and 0 < i < 7: return []
    return [f"s_memtime {rg(sST+2*i,2,'s')}"] if OPT['stamp'] and OPT['lstamp'] < 0 else []

def unit(T, qt, mode, slotA, slotB, shM0=(), shM1=(), shS1=(), shS0=()):
    nT, nq = (T, qt + 1) if qt < 3 else (T + 1, 0)
    pT, pq = (T, qt - 1) if qt > 0 else (T - 1, 3)
    s = S[qt]
    if mode == 'max':
        mx = [f"v_max3_f32 v{MX[qt]}, v{s+2*i}, v{s+2*i+1}, v{MX[qt]}" for i in range(8)]
        return ([qk(nT, nq, 0)] + list(shM0) + mx[:4] + [qk(nT, nq, 1)] + list(shM1) + mx[4:] + list(shS1) + ["s_nop 0"] + list(slotA)
                + list(shS0) + list(slotB) + ["s_nop 7"])
    def e(i):
        if mode == 'sub': return [f"v_sub_f32 v{s+i}, v{s+i}, v{MX[qt]}", f"v_exp_f32 v{s+i}, v{s+i}"]
        return [f"v_exp_f32 v{s+i}, v{s+i}"]
    E = lambda a, b: [x for i in range(a, b) for x in e(i)]
    return ([qk(nT, nq, 0)] + list(shM0) + E(0, 3) + [qk(nT, nq, 1)] + list(shM1) + E(3, 6)
            + [pv(pT, pq, 1)] + list(shS1) + E(6, 9) + [rs(pT, pq, 1)] + list(slotA) + E(9, 10)
            + [pv(T, qt, 0)] + list(shS0) + E(10, 13) + [rs(T, qt, 0)] + list(slotB) + E(13, 16))

def loop_body(mode, tag):
    pre, blk, post = [], [], []
    cur = pre
    for T in range(8):
        if T == 2:
            pre += ["s_waitcnt vmcnt(4) lgkmcnt(0)", f"s_cbranch_scc1 L{tag}_skip"]
            blk = norm([KRAW, KRAW + 4, KRAW + 8, KRAW + 12], False)
            cur = post
        n = (T + 1) & 7
        for qt in range(4):
            kw = {}
            A, B = [], []
            if qt == 0:
                A, B = [rdK(n, 0)], [rdK(n, 1)]
                if T == 7:
                    kw['shM1'] = ["s_waitcnt vmcnt(4) lgkmcnt(0)"]; kw['shS1'] = ["s_barrier"]
                elif T != 2:
                    kw['shS1'] = ["s_waitcnt lgkmcnt(2)" if T in (3, 4) else "s_waitcnt lgkmcnt(0)"]
            if qt == 1: A, B = [rdV(n, 0)], [rdV(n, 1)]
            if qt == 2:
                A, B = [rdV(n, 2)], [rdV(n, 3)]
                kw['shS0'] = ["s_waitcnt lgkmcnt(3)"]
            if qt == 3:
                if T == 0:
                    kw['shM0'] = [f"s_xor_b32 s{sM0}, s{sM0}, 0x8000"]
                    kw['shM1'] = [f"s_add_u32 s{sVOFF}, s{sVOFF}, 0x4000"]
                    kw['shS1'] = [f"s_mov_b32 m0, s{sM0}"]
                    A, B = [dmaV(0)], [dmaV(1)]
                if T == 1:
                    A, B = [dmaV(2)], [dmaV(3)]
                    kw['shS0'] = [f"s_cmp_eq_u32 s{sCNT}, 7"]
                if T == 2: A, B = [wrK(KRAW, 0)], [wrK(KRAW, 1)]
                if T == 3: A, B = [wrK(KRAW, 2)], [wrK(KRAW, 3)]
                if T == 4:
                    kw['shM0'] = [f"s_add_u32 s{sKOFF}, s{sKOFF}, 0x4000"]
                    A, B = [ldK(KRAW, 0), ldK(KRAW, 1), ldK(KRAW, 2), ldK(KRAW, 3)], []
                if T == 6:
                    cur += [f"v_xor_b32 v{VKRD}, 0x8000, v{VKRD}", f"v_xor_b32 v{VVRD}, 0x8000, v{VVRD}",
                            f"v_xor_b32 v{VKWR}, 0x8000, v{VKWR}"]
                if T == 7:
                    kw['shS1'] = [f"s_add_u32 s{sCNT}, s{sCNT}, 1"]
                    kw['shS0'] = [f"s_cmp_lg_u32 s{sCNT}, 8"]
            if OPT['lstamp'] >= 0 and qt == 0 and mode == 'fast':
                kw['shM0'] = [f"s_memtime {rg(72+2*T,2,'s')}"]
            if OPT['lstamp'] >= 0 and qt == 2 and T == 7 and mode == 'fast':
                cur += [f"s_cmp_eq_u32 s{sCNT}, {OPT['lstamp']}"] + [f"s_cmov_b64 {rg(sST+2*i,2,'s')}, {rg(72+2*i,2,'s')}" for i in range(8)]
            cur += unit(T, qt, mode, A, B, **kw)
    post += [f"s_cbranch_scc1 L{tag}_loop"]
    lines = [".p2align 6", f"L{tag}_loop:"] + pre + blk + [f"L{tag}_skip:"] + post
    return lines, pre + blk + post, pre + post

def stage_init():
    return [f"s_lshl_b32 s{sKOFF}, s{sW}, 12", f"s_mov_b32 s{sVOFF}, s{sKOFF}",
            f"s_add_u32 s{sM0}, s{sKOFF}, 0x4000", f"s_mov_b32 m0, s{sM0}", f"s_mov_b32 s{sCNT}, 0"]

def first_reads():
    o = [rdK(0, 0), rdK(0, 1)] + [rdV(0, i) for i in range(4)]
    o += [f"v_xor_b32 v{VKWR}, 0x8000, v{VKWR}"]
    o += [f"v_mov_b32 v{S[3]+8+i}, 0" for i in range(8)]
    o += [f"v_accvgpr_write_b32 a{VF[1]+4+i}, 0" for i in range(4)]
    o += ["s_waitcnt lgkmcnt(4)", qk(0, 0, 0), qk(0, 0, 1), "s_nop 7", "s_nop 2"]
    return o

def prologue():
    o = ["s_cmp_ge_u32 s2, 256", "s_cbranch_scc1 L_end"]
    o += stamp(0)
    if OPT['stamp']: o += [f"s_memrealtime {rg(sST+18,2,'s')}"]
    o += ["s_load_dwordx4 s[4:7], s[0:1], 0", "s_load_dwordx4 s[8:11], s[0:1], 16", "s_load_dwordx2 s[12:13], s[0:1], 32"]
    if OPT['stamp']: o += ["s_load_dwordx2 s[14:15], s[0:1], " + ("40" if OPT['dbg'] else "48")]
    o += [f"v_readfirstlane_b32 s{sW}, v0",
          f"s_and_b32 s{sHEAD}, s2, 7", f"s_lshr_b32 s{sTMP}, s2, 5", f"s_lshl_b32 s{sTMP}, s{sTMP}, 3",
          f"s_or_b32 s{sHEAD}, s{sHEAD}, s{sTMP}", f"s_bfe_u32 s{sQTR}, s2, 0x20003",
          f"s_lshr_b32 s{sW}, s{sW}, 6",
          f"v_and_b32 v{T0}, 63, v0",
          f"v_lshlrev_b32 v{VROW}, 6, v{T0}", f"v_lshlrev_b32 v{VLIN}, 4, v{T0}"]
    if OPT['pref']:
        o += ["s_getpc_b64 s[44:45]", f"v_lshlrev_b32 v{T1}, 7, v0", f"v_min_u32 v{T1}, L_slow - {NAME}_kernel - 256, v{T1}",
              f"global_load_dword v{T1+8}, v{T1}, s[44:45]"]
    o += [f"v_mov_b32 v{IDX}, 0xdddddddd", f"v_mov_b32 v{VKRD}, v{VLIN}",
          f"v_lshrrev_b32 v{T1}, 5, v0", f"v_lshlrev_b32 v{T1}, 11, v{T1}", f"v_and_b32 v{VKWR}, 31, v0",
          f"v_lshl_add_u32 v{VKWR}, v{VKWR}, 4, v{T1}",
          f"v_and_b32 v{VOUT}, {15 if OPT['swap16'] else 31}, v0", f"v_lshlrev_b32 v{VOUT}, 6, v{VOUT}", f"v_and_b32 v{T1}, {48 if OPT['swap16'] else 32}, v0", f"v_or_b32 v{VOUT}, v{VOUT}, v{T1}",
          f"v_and_b32 v{T1}, 32, v0",
          f"v_lshlrev_b32 v{VVRD}, 4, v{T1}", f"v_and_b32 v{T1}, 12, v0", f"v_lshl_add_u32 v{VVRD}, v{T1}, 4, v{VVRD}",
          f"v_and_b32 v{T1}, 1, v0", f"v_lshl_add_u32 v{VVRD}, v{T1}, 5, v{VVRD}",
          f"v_and_b32 v{T1}, 16, v0", f"v_add_u32 v{VVRD}, v{VVRD}, v{T1}",
          f"v_and_b32 v{T1}, 2, v0", f"v_lshl_add_u32 v{VVRD}, v{T1}, 2, v{VVRD}",
          f"v_add_u32 v{VVRD}, 0x4000, v{VVRD}",
          f"v_and_b32 v{T1}, 1, v0", f"v_lshlrev_b32 v{T1}, 4, v{T1}", f"v_mov_b32 v{T2}, 0x3f80", f"v_lshlrev_b32 v{T2}, v{T1}, v{T2}",
          f"v_and_b32 v{T1}, 2, v0", f"v_cmp_eq_u32 vcc, 0, v{T1}", "s_nop 1",
          f"v_cndmask_b32 v{IDENT}, 0, v{T2}, vcc", f"v_cndmask_b32 v{IDENT+1}, v{T2}, 0, vcc",
          f"v_mov_b32 v{T2}, 0x3f803f80", f"v_and_b32 v{T1}, 7, v0", f"v_cmp_eq_u32 vcc, 0, v{T1}", "s_nop 1",
          f"v_cndmask_b32 v{ONES}, 0, v{T2}, vcc", f"v_cndmask_b32 v{ONES+1}, 0, v{T2}, vcc",
          f"v_cmp_eq_u32 vcc, 4, v{T1}", "s_nop 1",
          f"v_cndmask_b32 v{ONES+2}, 0, v{T2}, vcc", f"v_cndmask_b32 v{ONES+3}, 0, v{T2}, vcc"]
    o += [f"v_mov_b32 v{O[0]+i}, 0" for i in range(64)] + [f"v_mov_b32 v{L[0]+i}, 0" for i in range(16)]
    o += stage_init()
    o += [f"s_lshl_b32 s{sQ0}, s{sW}, 13", f"s_add_u32 s{sQ1}, s{sQ0}, 0x1000",
          f"s_lshl_b32 s{sTMP}, s{sHEAD}, 17", f"s_lshl_b32 s{sTMP+1}, s{sQTR}, 15", f"s_add_u32 s{sTMP+1}, s{sTMP+1}, s{sTMP}",
          f"s_and_b32 s{sTMP+2}, s{sHEAD}, 30", f"s_lshl_b32 s{sTMP+2}, s{sTMP+2}, 1",
          f"s_mov_b32 s{sK+2}, 0x20000", f"s_mov_b32 s{sK+3}, 0x20000", f"s_mov_b32 s{sV+2}, 0x20000", f"s_mov_b32 s{sV+3}, 0x20000",
          f"s_mov_b32 s{sQ+2}, 0x8000", f"s_mov_b32 s{sQ+3}, 0x20000", f"s_mov_b32 s{sO+2}, 0x8000", f"s_mov_b32 s{sO+3}, 0x20000",
          ] + pst(1) + ["s_waitcnt lgkmcnt(0)"] + pst(2) + [
          f"s_load_dword s{sT}, s[10:11], s{sTMP+2}",
          f"s_add_u32 s{sK}, s6, s{sTMP}", f"s_addc_u32 s{sK+1}, s7, 0"]
    o += [ldK(K0RAW, i) for i in range(4)]
    o += pst(3) + [f"s_add_u32 s{sQ}, s4, s{sTMP+1}", f"s_addc_u32 s{sQ+1}, s5, 0"]
    for p in range(2):
        for c4 in range(4):
            o.append(f"buffer_load_dwordx4 {rg(Q[2*p+(c4&1)]+4*(c4>>1),4)}, v{VROW}, {rg(sQ,4,'s')}, s{sQ0+p} offen offset:{16*c4}")
    o += [f"s_add_u32 s{sV}, s8, s{sTMP}", f"s_addc_u32 s{sV+1}, s9, 0"]
    o += [dmaV(i) for i in range(4)]
    o += [f"s_add_u32 s{sKOFF}, s{sKOFF}, 0x4000"]
    o += [f"s_add_u32 s{sO}, s12, s{sTMP+1}", f"s_addc_u32 s{sO+1}, s13, 0"]
    o += pst(4)
    o += pst(5) + ["s_waitcnt lgkmcnt(0)"] + pst(6) + [f"s_and_b32 s{sTMP}, s{sHEAD}, 1", f"s_lshl_b32 s{sTMP}, s{sTMP}, 4",
          f"s_lshr_b32 s{sT}, s{sT}, s{sTMP}", f"s_lshl_b32 s{sT}, s{sT}, 16",
          f"v_mov_b32 v{T2}, 0x3fb8aa3b", f"v_mul_f32 v{T2}, s{sT}, v{T2}"]
    o += stamp(1)
    o += ["s_waitcnt vmcnt(12)"] + stamp(2)
    o += norm([K0RAW, K0RAW + 4, K0RAW + 8, K0RAW + 12], False) + [wrK(K0RAW, i) for i in range(4)]
    for p in range(2):
        o += [f"s_waitcnt vmcnt({8-4*p})"]
        o += norm([Q[2*p], Q[2*p+1], Q[2*p] + 4, Q[2*p+1] + 4], True)
        o += ["s_nop 1"]
        o += [f"v_permlane32_swap_b32 v{Q[2*p]+i}, v{Q[2*p+1]+i}" for i in range(8)]
    o += stamp(3)
    if OPT['owarm']:
        o += [f"buffer_load_dword v{T1+9}, v{VLIN}, {rg(sO,4,'s')}, s{sQ0} offen"]
    o += [ldK(KRAW, i) for i in range(4)]
    o += [f"s_waitcnt vmcnt({5 if OPT['owarm'] else 4}) lgkmcnt(0)", "s_barrier"]
    o += first_reads()
    o += stamp(4)
    o += [f"s_and_b32 s{sTMP}, s{sT}, 0x7fffffff", f"s_cmp_gt_u32 s{sTMP}, " + ("0" if OPT['force_slow'] else "0x41300000"), "s_cbranch_scc1 L_slow"]
    return o

def tail():
    return [pv(7, 3, 1), rs(7, 3, 1)]

def epilogue():
    o = stamp(5)
    for qt in range(4):
        if qt == 0: o += ["s_nop 1"]
        o += [f"v_rcp_f32 v{RR}, v{L[qt]}", "s_nop 0"]
        o += [f"v_pk_mul_f32 {rg(O[qt]+2*i,2)}, {rg(O[qt]+2*i,2)}, {rg(RR,2)} op_sel_hi:[1,0]" for i in range(8)]
        o += [f"v_cvt_pk_bf16_f32 v{TMP+8*qt+i}, v{O[qt]+2*i}, v{O[qt]+2*i+1}" for i in range(8)]
        if OPT['swap16']:
            o += ["s_nop 1"] + [f"v_permlane16_swap_b32 v{TMP+8*qt+i}, v{TMP+8*qt+4+i}" for i in range(4)]
        for j in range(2):
            o.append(f"buffer_store_dwordx4 {rg(TMP+8*qt+4*j,4)}, v{VOUT}, {rg(sO,4,'s')}, s{sQ0+(qt>>1)} offen offset:{(qt&1)*2048+(1024 if OPT['swap16'] else 16)*j}" + (" nt" if OPT['nt'] else ""))
    if OPT['stamp']:
        o += stamp(6) + ["s_waitcnt vmcnt(0)"] + stamp(7) + [f"s_memrealtime {rg(sST+16,2,'s')}", "s_waitcnt lgkmcnt(0)"]
        if OPT['dbg']:
            o += ["s_mov_b32 s4, s14", "s_mov_b32 s5, s15", "s_mov_b32 s6, 0x100", "s_mov_b32 s7, 0x20000", "v_mov_b32 v1, 0", "s_mov_b64 exec, 1"]
            for i in range(1, 8):
                o += [f"s_sub_u32 s8, s{sST+2*i}, s{sST}", "v_mov_b32 v2, s8", f"buffer_atomic_umax v2, v1, s[4:7], 0 offen offset:{4*i}"]
            o += [f"v_mov_b32 v2, s{sST+16}", "buffer_atomic_umax v2, v1, s[4:7], 0 offen offset:32",
                  f"s_not_b32 s8, s{sST+18}", "v_mov_b32 v2, s8", "buffer_atomic_umax v2, v1, s[4:7], 0 offen offset:36",
                  f"v_mov_b32 v2, s{sST+18}", "buffer_atomic_umax v2, v1, s[4:7], 0 offen offset:40",
                  f"s_not_b32 s8, s{sST+16}", "v_mov_b32 v2, s8", "buffer_atomic_umax v2, v1, s[4:7], 0 offen offset:44"]
            return o
        o += ["s_mov_b32 s4, s14", "s_mov_b32 s5, s15", "s_mov_b32 s6, 0x100000", "s_mov_b32 s7, 0x20000",
              f"s_lshl_b32 s8, s2, 2", f"s_add_u32 s8, s8, s{sW}", "s_lshl_b32 s8, s8, 6", "v_mov_b32 v1, 0"]
        for i in range(10):
            o += [f"v_mov_b32 v2, s{sST+2*i}", f"buffer_store_dword v2, v1, s[4:7], s8 offen offset:{4*i}"]
    return o

def slow_pre():
    return [f"v_mov_b32 v{MX[i]}, 0xff800000" for i in range(4)]

def slow_mid():
    o = ["s_waitcnt vmcnt(0) lgkmcnt(0)", "s_barrier"]
    for i in range(4):
        o += [f"v_mov_b32 v{T0}, v{MX[i]}", f"v_mov_b32 v{T1}, v{MX[i]}", "s_nop 1", f"v_permlane32_swap_b32 v{T0}, v{T1}", "s_nop 1",
              f"v_max_f32 v{MX[i]}, v{T0}, v{T1}"]
    o += stage_init() + [f"v_xor_b32 v{VKWR}, 0x8000, v{VKWR}", "s_nop 7", "s_nop 7"]
    o += [ldK(K0RAW, i) for i in range(4)] + [dmaV(i) for i in range(4)]
    o += [f"s_add_u32 s{sKOFF}, s{sKOFF}, 0x4000"] + [ldK(KRAW, i) for i in range(4)]
    o += ["s_waitcnt vmcnt(8)"]
    o += norm([K0RAW, K0RAW + 4, K0RAW + 8, K0RAW + 12], False) + [wrK(K0RAW, i) for i in range(4)]
    o += ["s_waitcnt vmcnt(4) lgkmcnt(0)", "s_barrier"] + first_reads()
    return o

pro = prologue()
fl, fa, fb = loop_body('fast', 'f')
ml, ma, mb = loop_body('max', 'm')
sl, sa, sb = loop_body('sub', 's')
ta, ep = tail(), epilogue()
probs = []
probs += check_path(pro + fa + fa + fb + ["s_nop 1"] + ta + ep, "fast")
probs += check_path(pro + slow_pre() + ma + ma + mb + slow_mid() + sa + sa + sb + ["s_nop 1"] + ta + ep, "slow")
if probs:
    print("\n".join(probs[:40])); raise SystemExit("hazards found")

body = pro + fl + ["L_tail:", "s_nop 1"] + ta + ep + ["L_end:", "s_endpgm", "L_slow:"] + slow_pre() + ml + slow_mid() + sl + ["s_branch L_tail"]
hdr = open("cdna_kernels/" + NAME + ".s.ref").read().split("; Override launch")[0]
out = hdr + f"""; Cosine-similarity attention, one workgroup per (head, 512 queries), one wave per SIMD (128 queries).
; S^T = Kn Qn^T on the dense bf16 MFMA, exp2 in place, O^T += V^T P^T and the row sums on the sparse MFMA
; (its index picks the high halves of the fp32 P registers).  |t| <= 11 bounds every logit, so the
; max subtraction is skipped; any other t takes the true-max path (L_slow).
; @launch grid=(256,1,1) block=(256,1,1) lds=65536
.amdgcn_target "amdgcn-amd-amdhsa--gfx950"
.text
.globl {NAME}_kernel
.p2align 8
.type {NAME}_kernel,@function
{NAME}_kernel:
""" + "\n".join(x if x.endswith(":") or x.startswith(".") else "    " + x for x in body) + f"""
.section .rodata,"a"
.p2align 6
.amdhsa_kernel {NAME}_kernel
  .amdhsa_next_free_vgpr 288
  .amdhsa_next_free_sgpr 96
  .amdhsa_accum_offset 256
  .amdhsa_group_segment_fixed_size 0
  .amdhsa_kernarg_size 56
  .amdhsa_user_sgpr_count 2
  .amdhsa_user_sgpr_kernarg_segment_ptr 1
  .amdhsa_system_sgpr_workgroup_id_x 1
  .amdhsa_float_denorm_mode_32 3
.end_amdhsa_kernel
"""
open(sys.argv[1], "w").write(out)
print("wrote", sys.argv[1], len(body), "lines")
```

```python
import sys
from asmlib import rg, check_path, I

NAME = "standalone__qk_norm__prompt"
OPT = dict(stamp=None, force_slow=False, nt=True, pref=True, owarm=False, split0=8, splitN=8, q1pos=0, gram=False,
           nconst=40, order="KVQ")
for a in sys.argv[2:]:
    k, v = a.split("=", 1); assert k in OPT, k; OPT[k] = eval(v)

S = [0, 16, 32, 48]
O = [64, 80, 96, 112]
Q = [128, 136, 144, 152]
TMP = 160
KRAW = 192
L = [208, 212, 216, 220]
IDX, VKRD, VVRD, VKWR, VROW, VOUT = 224, 225, 226, 227, 228, 229
VLIN = VKRD
IDENT = 230
ONES = 232
RR = 236
TS = 238
MX = [240, 241, 242, 243]
T0, T1, T2 = 244, 245, 246
JUNK = 247
VLIN2 = 248
GR = 252
KF = [0, 8]
VF = [16, 24]
K0RAW = 16
sQ, sK, sV, sO = 16, 20, 24, 28
sW, sHEAD, sQTR, sT, sCNT, sKOFF, sVOFF, sM0, sQ0, sQ1, sTMP = 32, 33, 34, 35, 36, 37, 38, 39, 40, 41, 42
sOFF = 48
sMB = 56
sMSK = 58
sST = 64

def qk(par, qt, sb, m):
    c = "0" if m == 0 else rg(S[sb], 16)
    return f"v_mfma_f32_32x32x16_bf16 {rg(S[sb],16)}, {rg(KF[par]+4*m,4,'a')}, {rg(Q[qt]+4*m,4)}, {c}"
def pv(par, qt, sb, m):
    return f"v_smfmac_f32_32x32x32_bf16 {rg(O[qt],16)}, {rg(VF[par]+4*m,4,'a')}, {rg(S[sb]+8*m,8)}, v{IDX}"
def rs(qt, sb, m):
    return f"v_smfmac_f32_16x16x64_bf16 {rg(L[qt],4)}, {rg(ONES,4)}, {rg(S[sb]+8*m,8)}, v{IDX}"
def rdK(par, buf, T, m):
    return f"ds_read_b128 {rg(KF[par]+4*m,4,'a')}, v{VKRD} offset:{buf*32768+T*2048+m*1024}"
def rdV(par, buf, T, i):
    return f"ds_read_b64_tr_b16 {rg(VF[par]+2*i,2,'a')}, v{VVRD} offset:{buf*32768+T*2048+(i>>1)*1024+(i&1)*256}"
def ldK(dst, i, so):
    return f"buffer_load_dwordx4 {rg(dst+4*i,4)}, v{VROW}, {rg(sK,4,'s')}, s{so} offen offset:{16*i}"
def ldQ(p, c4):
    return f"buffer_load_dwordx4 {rg(Q[2*p+(c4&1)]+4*(c4>>1),4)}, v{VROW}, {rg(sQ,4,'s')}, s{sQ0+p} offen offset:{16*c4}"
def dmaV(i, so, va=VLIN):
    return f"buffer_load_dwordx4 v{va}, {rg(sV,4,'s')}, s{so} offen offset:{1024*i} lds"
def wrK(src, buf, i):
    return f"ds_write_b128 v{VKWR}, {rg(src+4*i,4)} offset:{buf*32768+512*i}"

def norm_parts(groups, isq):
    R = [g + i for g in groups for i in range(4)]
    dots = [f"v_dot2_f32_bf16 v{RR+(i&1)}, v{R[i]}, v{R[i]}, " + ("0" if i < 2 else f"v{RR+(i&1)}") for i in range(16)]
    x = [f"v_mfma_f32_4x4x4_16b_bf16 {rg(TMP+4*i,4)}, {rg(IDENT,2)}, {rg(R[2*i],2)}, 0" for i in range(8)]
    small = [f"v_add_f32 v{RR}, v{RR}, v{RR+1}", f"v_sqrt_f32 v{RR}, v{RR}", f"v_add_f32 v{RR}, 0x358637bd, v{RR}", f"v_rcp_f32 v{RR}, v{RR}"]
    if isq: small += [f"v_mul_f32 v{RR}, v{TS}, v{RR}"]
    pk = [f"v_pk_mul_f32 {rg(TMP+2*i,2)}, {rg(TMP+2*i,2)}, {rg(RR,2)} op_sel_hi:[1,0]" for i in range(16)]
    cv = [f"v_cvt_pk_bf16_f32 v{R[i]}, v{TMP+2*i}, v{TMP+2*i+1}" for i in range(16)]
    gr = [f"v_mfma_f32_4x4x4_16b_bf16 {rg(GR,4)}, {rg(R[2*i],2)}, {rg(R[2*i],2)}, " + ("0" if i == 0 else rg(GR, 4)) for i in range(8)]
    gsel = [f"v_cndmask_b32 v{RR}, v{GR}, v{GR+1}, {rg(sMSK,2,'s')}", f"v_cndmask_b32 v{RR+1}, v{GR+2}, v{GR+3}, {rg(sMSK,2,'s')}",
            f"v_cndmask_b32 v{RR}, v{RR}, v{RR+1}, {rg(sMSK+2,2,'s')}"]
    return dots, x, small, pk, cv, gr, gsel
def norm(groups, isq):
    dots, x, sm, pk, cv, _, _ = norm_parts(groups, isq)
    o = dots + [x[0], x[1], x[2], sm[0], x[3], sm[1], x[4], sm[2], x[5], sm[3], x[6]] + sm[4:] + [x[7]]
    return o + pk + cv
KG = lambda b: [b, b + 4, b + 8, b + 12]
QG = lambda p: [Q[2*p], Q[2*p+1], Q[2*p] + 4, Q[2*p+1] + 4]
def qswap(p):
    return [f"v_permlane32_swap_b32 v{Q[2*p]+i}, v{Q[2*p+1]+i}" for i in range(8)]

class It:
    def __init__(s, text, deps=(), shadow=0):
        s.text = text; s.deps = list(deps); s.shadow = shadow
def mk(x): return x if isinstance(x, It) else It(x)

def insert_waits(items):
    items = [mk(x) for x in items]
    ins = [I(x.text) for x in items]
    n = len(items)
    idx = {id(x): i for i, x in enumerate(items)}
    cls = [None] * n
    for i, c in enumerate(ins):
        if c.label or c.dir: continue
        if c.ds: cls[i] = 'l'
        elif c.vmem: cls[i] = 'v'
    seq = {'l': [i for i in range(n) if cls[i] == 'l'], 'v': [i for i in range(n) if cls[i] == 'v']}
    import bisect
    done = {'l': -1, 'v': -1}
    waits = {}
    pend = {}
    used = {}
    def need(j, i):
        k = cls[i]
        assert i < j, (items[i].text, items[j].text)
        if done[k] >= i: return
        p = j
        q = j - 1
        while q > i:
            if items[q].shadow:
                if (q + 1) in waits or used.get(q, 0) < items[q].shadow: p = q + 1
                break
            if ins[q].mn == 's_barrier' or ins[q].label: break
            q -= 1
        cnt = bisect.bisect_left(seq[k], p) - bisect.bisect_right(seq[k], i)
        lim = 15 if k == 'l' else 63
        cnt = min(cnt, lim)
        w = waits.setdefault(p, {})
        w[k] = min(w.get(k, 99), cnt)
        pos = bisect.bisect_left(seq[k], p) - w[k] - 1
        done[k] = max(done[k], seq[k][pos])
    for q in range(n):
        if items[q].shadow:
            r = q + 1; c = 0
            while r < n and ins[r].mn.startswith('s_'): c += 1; r += 1
            used[q] = c
    for j, c in enumerate(ins):
        if c.label or c.dir: continue
        if c.mn == 's_waitcnt':
            t = items[j].text
            import re
            for k, nm in (('l', 'lgkmcnt'), ('v', 'vmcnt')):
                m = re.search(nm + r'\((\d+)\)', t)
                if m:
                    pos = bisect.bisect_left(seq[k], j) - int(m.group(1)) - 1
                    if pos >= 0: done[k] = max(done[k], seq[k][pos])
            continue
        want = set()
        for r in (c.r | c.w):
            if r in pend: want.add(pend[r])
        for d in items[j].deps: want.add(idx[id(d)])
        for i in sorted(want): need(j, i)
        for r in list(c.r | c.w):
            if r in pend and done[cls[pend[r]]] >= pend[r]: del pend[r]
        if cls[j] and c.w:
            for r in c.w:
                if r[0] in 'va': pend[r] = j
    out = []
    for j, x in enumerate(items):
        if j in waits:
            w = waits[j]
            out.append("s_waitcnt " + " ".join(f"{nm}({w[k]})" for k, nm in (('v', 'vmcnt'), ('l', 'lgkmcnt')) if k in w))
        out.append(x.text)
    return out

_ns = [0]
def stamp(tag):
    st = OPT['stamp']
    if not st or tag not in st: return []
    return [f"s_memtime {rg(sST + 2 * (1 + st.index(tag)), 2, 's')}"]

def visits_for(c):
    full = [0, 1, 2, 3]
    if c == 0 and OPT['split0']:
        n = OPT['split0']
        return [(c, T, [0, 1]) for T in range(n)] + [(c, T, [2, 3]) for T in range(n)] + [(c, T, full) for T in range(n, 8)]
    if c == 7 and OPT['splitN']:
        n = 8 - OPT['splitN']
        return [(c, T, full) for T in range(n)] + [(c, T, [0, 1]) for T in range(n, 8)] + [(c, T, [2, 3]) for T in range(n, 8)]
    return [(c, T, full) for T in range(8)]

class U:
    def __init__(s, n, qt):
        s.n = n; s.qt = qt
        s.slot = {k: [] for k in ('pre', 'M0', 'M1', 'S1', 'A', 'S0', 'B', 'X0', 'X1', 'E1', 'E4', 'E7', 'E11')}

def out_parts(qt, pkform=True):
    t = TMP + 8 * qt
    a = [f"v_rcp_f32 v{RR}, v{L[qt]}"]
    b = [f"v_pk_mul_f32 {rg(O[qt]+2*i,2)}, {rg(O[qt]+2*i,2)}, {rg(RR,2)} op_sel_hi:[1,0]" for i in range(8)]
    order = [0, 4, 1, 5, 2, 6, 3, 7]
    c = [f"v_cvt_pk_bf16_f32 v{t+i}, v{O[qt]+2*i}, v{O[qt]+2*i+1}" for i in order]
    d = [f"v_permlane16_swap_b32 v{t+i}, v{t+4+i}" for i in range(4)]
    st = [f"buffer_store_dwordx4 {rg(t+4*j,4)}, v{VOUT}, {rg(sO,4,'s')}, s{sQ0+(qt>>1)} offen offset:{(qt&1)*2048+1024*j}" + (" nt" if OPT['nt'] else "")
          for j in range(2)]
    return a, b, c, d, st

def fast_main(first_items):
    V = [v for c in range(8) for v in visits_for(c)]
    units = [U(n, qt) for n, v in enumerate(V) for qt in v[2]]
    first = {}; last = {}
    for i, u in enumerate(units):
        first.setdefault(u.n, i); last[u.n] = i
    NV = len(V)
    reads = {c: list(first_items) if c == 0 else [] for c in range(8)}
    free = {(i, s) for i in range(len(units)) for s in 'AB'}
    def put(i, s, x):
        x = mk(x); units[i].slot[s].append(x); free.discard((i, s)); return x
    for n in range(NV):
        f, l = first[n], last[n]
        if n + 1 < NV:
            c, T, _ = V[n + 1]
            pos = [(f, 'A'), (f, 'B'), (f + 1, 'A'), (f + 1, 'B')] if l - f >= 2 else [(f, 'A'), (f, 'A'), (f, 'B'), (f, 'B')]
            for i in range(4): reads[c].append(put(*pos[i], rdV((n + 1) & 1, c & 1, T, i)))
        if n + 2 < NV:
            c, T, _ = V[n + 2]
            for m in range(2): reads[c].append(put(l, 'AB'[m], rdK(n & 1, c & 1, T, m)))
    cfirst = {}
    for n, v in enumerate(V): cfirst.setdefault(v[0], n)
    def place(lo, x, hi=None):
        for i in range(lo, hi if hi else lo + 4):
            for s in 'AB':
                if (i, s) in free: return i, put(i, s, x)
        for i in range(lo, lo + 8):
            for s in ('M0', 'M1'):
                if not units[i].slot[s]: return i, put(i, s, x)
        raise RuntimeError
    def spread_norm(u0, groups, isq):
        dots, x, sm, pk, cv, gr, gsel = norm_parts(groups, isq)
        if OPT['gram']:
            seq = gr + x
            for k, y in enumerate(seq): put(u0 + k // 2, 'X%d' % (k & 1), y)
            sm = gsel + sm[1:]
            for k, y in enumerate(sm): put(u0 + 5 + k // 4, ('E1', 'E4', 'E7', 'E11')[k % 4], y)
            e = u0 + 9
        else:
            for y in dots: put(u0, 'pre', y)
            for k, y in enumerate(x): put(u0 + k // 2, 'X%d' % (k & 1), y)
            for k, y in enumerate(sm): put(u0 + 1 + k // 4, ('E1', 'E4', 'E7', 'E11')[k % 4], y)
            e = u0 + 5
        for y in pk + cv: put(e, 'pre', y)
        return e
    bar_unit = {}
    for c in range(1, 8): bar_unit[c] = last[cfirst[c] - 2]
    u = 0
    if OPT['split0']:
        if OPT['q1pos'] > 0:
            for c4 in range(4): u, _ = place(max(u, OPT['q1pos'] - 1), ldQ(1, c4))
        e = spread_norm(2 * OPT['split0'] - 2 - (10 if OPT['gram'] else 6), QG(1), True)
        for y in ["s_nop 0"] + qswap(1): put(e, 'pre', y)
    bars = {}; fills = {}
    for c in range(1, 8):
        lo = 0 if c == 1 else bar_unit[c - 1]
        hi = bar_unit[c]
        if c == 1:
            u = u + 1
            for i in range(4): u, _ = place(u, ldK(KRAW, i, sOFF + 1))
            lo = u + 1
        put(lo, 'S0', f"s_mov_b32 m0, s{sMB + (c & 1)}")
        u = lo + 1; dm = []
        for i in range(4):
            u, y = place(u, dmaV(i, sOFF + c)); dm.append(y)
        n0 = max(u + 1, 2 * OPT['split0'] if c == 1 else 0)
        if c == 1 and not OPT['split0']: n0 = max(n0, 10)
        e = spread_norm(n0, KG(KRAW), False)
        u = e; wr = []
        for i in range(4):
            u, y = place(u, wrK(KRAW, c & 1, i), u + 5); wr.append(y)
        assert u < hi, (c, u, hi)
        if c < 7:
            u += 1
            for i in range(4): u, _ = place(u, It(ldK(KRAW, i, sOFF + c + 1), deps=[wr[i]]))
        bars[c] = put(hi, 'S1', It("s_barrier", deps=dm + wr + reads[c - 1])); fills[c] = dm + wr
    if OPT['pref']:
        place(40, It(f"global_load_dword v{JUNK}, v{T2}, s[44:45]"))
    tail_q = [0, 1, 2, 3]
    if OPT['splitN']:
        lastu = {u.qt: i for i, u in enumerate(units)}
        for qt in (0, 1):
            a, b, c, d, st = out_parts(qt)
            u = lastu[1] + 2 + 2 * qt
            put(u, 'E11', a[0])
            for y in b + c + d: put(u + 1, 'pre', y)
            for j in range(2): put(u + 1 + j, 'M1', st[j])
        tail_q = [2, 3]
    o = []
    N = len(units)
    for i, u in enumerate(units):
        sl = u.slot; s = S[i & 3]
        e = lambda a, b: [y for k in range(a, b) for y in [It(f"v_exp_f32 v{s+k}, v{s+k}")] + sl.get('E%d' % k, [])]
        nx = units[i + 1] if i + 1 < N else None
        pr = units[i - 1] if i else None
        o += stamp(f"u{i}") + sl['pre']
        sh = lambda t, cap: It(t, shadow=cap)
        rcap = lambda k: 1 if sl[k] else 2
        o += ([sh(qk(nx.n & 1, nx.qt, (i + 1) & 3, 0), 1)] if nx else []) + sl['M0'] + e(0, 3)
        o += ([sh(qk(nx.n & 1, nx.qt, (i + 1) & 3, 1), 1)] if nx else []) + sl['M1'] + e(3, 6)
        o += ([sh(pv(pr.n & 1, pr.qt, (i - 1) & 3, 1), 0 if sl['S1'] else 2)] if pr else []) + sl['S1'] + e(6, 9)
        o += ([sh(rs(pr.qt, (i - 1) & 3, 1), rcap('A'))] if pr else []) + sl['A'] + e(9, 10)
        o += [sh(pv(u.n & 1, u.qt, i & 3, 0), 2)] + sl['S0'] + e(10, 13)
        o += [sh(rs(u.qt, i & 3, 0), rcap('B'))] + sl['B'] + e(13, 14) + sl['X0'] + e(14, 15) + sl['X1'] + e(15, 16)
    pos = {id(x): k for k, x in enumerate(o)}
    for c in range(1, 8):
        assert all(pos[id(x)] > pos[id(bars[c])] for x in reads[c])
        if c > 1: assert all(pos[id(x)] > pos[id(bars[c - 1])] for x in fills[c])
    u = units[-1]
    o += stamp("end")
    a, b, c, d, st = out_parts(tail_q[0])
    o += [a[0], "s_nop 0", pv(u.n & 1, u.qt, (N - 1) & 3, 1), rs(u.qt, (N - 1) & 3, 1)]
    for k, qt in enumerate(tail_q):
        a, b, c, d, st = out_parts(qt)
        o += (a + ["s_nop 0"] if k else []) + b + c + d + st
    return o

def consts():
    o = [f"v_mov_b32 v{IDX}, 0xdddddddd",
         f"v_lshrrev_b32 v{T1}, 5, v0", f"v_lshlrev_b32 v{T1}, 11, v{T1}", f"v_and_b32 v{VKWR}, 31, v0",
         f"v_lshl_add_u32 v{VKWR}, v{VKWR}, 4, v{T1}",
         f"v_and_b32 v{T1}, 1, v0", f"v_lshlrev_b32 v{T1}, 4, v{T1}", f"v_mov_b32 v{T0}, 0x3f80", f"v_lshlrev_b32 v{T0}, v{T1}, v{T0}",
         f"v_and_b32 v{T1}, 2, v0", f"v_cmp_eq_u32 vcc, 0, v{T1}",
         f"v_and_b32 v{VOUT}, 15, v0", f"v_lshlrev_b32 v{VOUT}, 6, v{VOUT}",
         f"v_cndmask_b32 v{IDENT}, 0, v{T0}, vcc", f"v_cndmask_b32 v{IDENT+1}, v{T0}, 0, vcc",
         f"v_and_b32 v{T1}, 48, v0", f"v_or_b32 v{VOUT}, v{VOUT}, v{T1}",
         f"v_and_b32 v{T1}, 32, v0",
         f"v_lshlrev_b32 v{VVRD}, 4, v{T1}", f"v_and_b32 v{T1}, 12, v0", f"v_lshl_add_u32 v{VVRD}, v{T1}, 4, v{VVRD}",
         f"v_and_b32 v{T1}, 1, v0", f"v_lshl_add_u32 v{VVRD}, v{T1}, 5, v{VVRD}",
         f"v_and_b32 v{T1}, 16, v0", f"v_add_u32 v{VVRD}, v{VVRD}, v{T1}",
         f"v_and_b32 v{T1}, 2, v0", f"v_lshl_add_u32 v{VVRD}, v{T1}, 2, v{VVRD}",
         f"v_and_b32 v{T1}, 7, v0", f"v_cmp_eq_u32 vcc, 0, v{T1}",
         f"v_add_u32 v{VVRD}, 0x4000, v{VVRD}", f"v_mov_b32 v{T0}, 0x3f803f80",
         f"v_cndmask_b32 v{ONES}, 0, v{T0}, vcc", f"v_cndmask_b32 v{ONES+1}, 0, v{T0}, vcc",
         f"v_cmp_eq_u32 vcc, 4, v{T1}", f"v_mov_b32 v{L[0]}, 0", f"v_mov_b32 v{L[0]+1}, 0",
         f"v_cndmask_b32 v{ONES+2}, 0, v{T0}, vcc", f"v_cndmask_b32 v{ONES+3}, 0, v{T0}, vcc"]
    o += [f"v_mov_b32 v{L[0]+i}, 0" for i in range(2, 16)] + [f"v_mov_b32 v{O[0]+i}, 0" for i in range(64)]
    if OPT['gram']:
        o += [f"s_mov_b32 s{sMSK}, 0xaaaaaaaa", f"s_mov_b32 s{sMSK+1}, 0xaaaaaaaa", f"s_mov_b32 s{sMSK+2}, 0xcccccccc", f"s_mov_b32 s{sMSK+3}, 0xcccccccc"]
    return o

def prologue():
    o = ["s_cmp_ge_u32 s2, 256", "s_cbranch_scc1 L_end"]
    if OPT['stamp']: o += [f"s_memtime {rg(sST,2,'s')}", f"s_memrealtime {rg(sST+18,2,'s')}"]
    o += ["s_load_dwordx8 s[4:11], s[0:1], 0", "s_load_dwordx2 s[12:13], s[0:1], 32"]
    if OPT['stamp']: o += ["s_load_dwordx2 s[14:15], s[0:1], 48"]
    if OPT['pref']:
        o += ["s_getpc_b64 s[44:45]", f"v_lshlrev_b32 v{T2}, 7, v0", f"global_load_dword v{JUNK}, v{T2}, s[44:45]"]
    o += [f"v_readfirstlane_b32 s{sW}, v0",
          f"s_and_b32 s{sHEAD}, s2, 7", f"s_lshr_b32 s{sTMP}, s2, 5", f"s_lshl_b32 s{sTMP}, s{sTMP}, 3",
          f"s_or_b32 s{sHEAD}, s{sHEAD}, s{sTMP}", f"s_bfe_u32 s{sQTR}, s2, 0x20003",
          f"s_lshr_b32 s{sW}, s{sW}, 6",
          f"v_and_b32 v{T0}, 63, v0", f"v_lshlrev_b32 v{VROW}, 6, v{T0}", f"v_lshlrev_b32 v{VLIN}, 4, v{T0}",
          f"s_lshl_b32 s{sOFF}, s{sW}, 12", f"s_add_u32 s{sMB}, s{sOFF}, 0x4000", f"s_mov_b32 m0, s{sMB}",
          f"s_lshl_b32 s{sQ0}, s{sW}, 13",
          f"s_lshl_b32 s{sTMP}, s{sHEAD}, 17", f"s_lshl_b32 s{sTMP+1}, s{sQTR}, 15", f"s_add_u32 s{sTMP+1}, s{sTMP+1}, s{sTMP}",
          f"s_and_b32 s46, s{sHEAD}, 30", f"s_lshl_b32 s46, s46, 1",
          f"s_mov_b32 s{sK+2}, 0x20000", f"s_mov_b32 s{sK+3}, 0x20000", f"s_mov_b32 s{sV+2}, 0x20000", f"s_mov_b32 s{sV+3}, 0x20000",
          f"s_mov_b32 s{sQ+2}, 0x8000", f"s_mov_b32 s{sQ+3}, 0x20000"]
    cs = consts()
    nc = OPT['nconst']
    o += cs[:nc] + stamp("ka0") + ["s_waitcnt lgkmcnt(0)"] + stamp("ka1")
    grp = {'K': [f"s_add_u32 s{sK}, s6, s{sTMP}", f"s_addc_u32 s{sK+1}, s7, 0"] + [ldK(K0RAW, i, sOFF) for i in range(4)],
           'Q': [f"s_add_u32 s{sQ}, s4, s{sTMP+1}", f"s_addc_u32 s{sQ+1}, s5, 0"] + [ldQ(0, i) for i in range(4)]}
    dm = [It(dmaV(i, sOFF)) for i in range(4)]
    grp['V'] = [f"s_add_u32 s{sV}, s8, s{sTMP}", f"s_addc_u32 s{sV+1}, s9, 0"] + dm
    for k, g in enumerate(OPT['order']):
        o += grp[g]
        if k == 0: o += [f"s_load_dword s{sT}, s[10:11], s46"]
    o += [f"s_add_u32 s{sQ1}, s{sQ0}, 0x1000"]
    if not OPT['split0']: o += [ldQ(1, i) for i in range(4)]
    o += stamp("iss")
    o += [f"s_add_u32 s{sO}, s12, s{sTMP+1}", f"s_addc_u32 s{sO+1}, s13, 0", f"s_mov_b32 s{sO+2}, 0x8000", f"s_mov_b32 s{sO+3}, 0x20000",
          f"s_add_u32 s{sMB+1}, s{sMB}, 0x8000"]
    o += [f"s_add_u32 s{sOFF+c}, s{sOFF+c-1}, 0x4000" for c in range(1, 8)]
    o += cs[nc:]
    if OPT['pref']:
        o += [f"v_add_u32 v{T2}, 0x8000, v{T2}", f"v_min_u32 v{T2}, L_slow - {NAME}_kernel - 256, v{T2}"]
    o += ["s_waitcnt lgkmcnt(0)", f"s_and_b32 s{sTMP}, s{sHEAD}, 1", f"s_lshl_b32 s{sTMP}, s{sTMP}, 4",
          f"s_lshr_b32 s{sT}, s{sT}, s{sTMP}", f"s_lshl_b32 s{sT}, s{sT}, 16",
          f"v_mov_b32 v{TS}, 0x3fb8aa3b", f"v_mul_f32 v{TS}, s{sT}, v{TS}"]
    o += [f"s_and_b32 s{sTMP}, s{sT}, 0x7fffffff", f"s_cmp_gt_u32 s{sTMP}, " + ("0" if OPT['force_slow'] else "0x41300000"), "s_cbranch_scc1 L_slow"]
    head = list(o)
    o += stamp("cst")
    nk = norm(KG(K0RAW), False)
    wr = [It(wrK(K0RAW, 0, i)) for i in range(4)]
    V0 = visits_for(0)
    fr = [It(rdK(0, 0, V0[0][1], m)) for m in range(2)] + [It(rdK(1, 0, V0[1][1], m)) for m in range(2)] + [It(rdV(0, 0, V0[0][1], i)) for i in range(4)]
    q1 = [ldQ(1, i) for i in range(4)] if OPT['split0'] and OPT['q1pos'] == 0 else []
    if OPT['owarm']: q1 += [f"buffer_load_dword v{JUNK}, v{VLIN}, {rg(sO,4,'s')}, s{sQ0} offen"]
    nq = norm(QG(0), True) + ["s_nop 0"] + qswap(0)
    if not OPT['split0']: nq += norm(QG(1), True) + ["s_nop 0"] + qswap(1)
    kpart = nk[:1] + stamp("k0") + nk[1:] + wr + stamp("k1")
    bar = [It("s_barrier", deps=dm + wr)] + stamp("bar") + fr
    qpart = nq[:1] + stamp("q0") + nq[1:] + stamp("q1")
    if OPT['order'].index('Q') > OPT['order'].index('V'): o += kpart + q1 + bar + qpart
    elif OPT['order'][0] == 'K': o += kpart + q1 + qpart + bar
    else: o += qpart + q1 + kpart + bar
    o += ["s_nop 0", qk(0, V0[0][2][0], 0, 0), qk(0, V0[0][2][0], 0, 1), "s_nop 7", "s_nop 2"]
    return head, o, fr

def stamp_out():
    if not OPT['stamp']: return []
    o = stamp("sti") + ["s_waitcnt vmcnt(0)", f"s_memtime {rg(sST+14,2,'s')}", f"s_memrealtime {rg(sST+16,2,'s')}", "s_waitcnt lgkmcnt(0)"]
    o += ["s_mov_b32 s4, s14", "s_mov_b32 s5, s15", "s_mov_b32 s6, 0x100000", "s_mov_b32 s7, 0x20000",
          f"s_lshl_b32 s8, s2, 2", f"s_add_u32 s8, s8, s{sW}", "s_lshl_b32 s8, s8, 6", "v_mov_b32 v1, 0"]
    for i in range(10):
        o += [f"v_mov_b32 v2, s{sST+2*i}", f"buffer_store_dword v2, v1, s[4:7], s8 offen offset:{4*i}"]
    return o

def s_unit(T, qt, mode, side):
    nT, nq = (T, qt + 1) if qt < 3 else (T + 1, 0)
    pT, pq = (T, qt - 1) if qt > 0 else (T - 1, 3)
    s = S[qt]
    if mode == 'max':
        mx = [f"v_max3_f32 v{MX[qt]}, v{s+2*i}, v{s+2*i+1}, v{MX[qt]}" for i in range(8)]
        return [qk(nT & 1, nq, nq, 0), qk(nT & 1, nq, nq, 1)] + mx + side + ["s_nop 3"]
    E = lambda a, b: [x for i in range(a, b) for x in (f"v_sub_f32 v{s+i}, v{s+i}, v{MX[qt]}", f"v_exp_f32 v{s+i}, v{s+i}")]
    return ([qk(nT & 1, nq, nq, 0)] + E(0, 3) + [qk(nT & 1, nq, nq, 1)] + E(3, 6) + [pv(pT & 1, pq, pq, 1)] + E(6, 9) + [rs(pq, pq, 1)]
            + side + E(9, 10) + [pv(T & 1, qt, qt, 0)] + E(10, 13) + [rs(qt, qt, 0)] + E(13, 16))
def s_loop(mode, tag):
    o = []
    for T in range(8):
        n = (T + 1) & 7
        if T == 2: o += ["s_waitcnt vmcnt(4)"] + norm(KG(KRAW), False) + [wrK(KRAW, 0, i) for i in range(4)]
        for qt in range(4):
            side = []
            if qt == 0:
                side = ["s_waitcnt vmcnt(4) lgkmcnt(0)", "s_barrier"] if T == 7 else ["s_waitcnt lgkmcnt(0)"]
                side += [rdK(n & 1, 0, n, 0), rdK(n & 1, 0, n, 1)]
            if qt == 1: side = [rdV(n & 1, 0, n, i) for i in range(4)]
            if qt == 2: side = ["s_waitcnt lgkmcnt(0)"]
            if qt == 3:
                if T == 0: side = [f"s_xor_b32 s{sM0}, s{sM0}, 0x8000", f"s_mov_b32 m0, s{sM0}", f"s_add_u32 s{sVOFF}, s{sVOFF}, 0x4000"] + [dmaV(i, sVOFF, VLIN2) for i in range(4)]
                if T == 4: side = [f"s_add_u32 s{sKOFF}, s{sKOFF}, 0x4000"] + [ldK(KRAW, i, sKOFF) for i in range(4)]
                if T == 6: side = [f"v_xor_b32 v{r}, 0x8000, v{r}" for r in (VKRD, VVRD, VKWR)]
                if T == 7: side = [f"s_add_u32 s{sCNT}, s{sCNT}, 1", f"s_cmp_lg_u32 s{sCNT}, 8"]
            o += s_unit(T, qt, mode, side)
    o += [f"s_cbranch_scc1 L{tag}_loop"]
    return [f"L{tag}_loop:"] + o
def s_stage():
    o = ["s_waitcnt vmcnt(0) lgkmcnt(0)", "s_barrier", "s_nop 7", "s_nop 7",
         f"s_mov_b32 s{sKOFF}, s{sOFF}", f"s_mov_b32 s{sVOFF}, s{sOFF}", f"s_mov_b32 s{sM0}, s{sMB}", f"s_mov_b32 m0, s{sM0}", f"s_mov_b32 s{sCNT}, 0"]
    o += [ldK(K0RAW, i, sKOFF) for i in range(4)] + [dmaV(i, sVOFF, VLIN2) for i in range(4)]
    o += [f"s_add_u32 s{sKOFF}, s{sKOFF}, 0x4000"] + [ldK(KRAW, i, sKOFF) for i in range(4)]
    o += ["s_waitcnt vmcnt(8)"] + norm(KG(K0RAW), False) + [wrK(K0RAW, 0, i) for i in range(4)]
    o += ["s_waitcnt vmcnt(4) lgkmcnt(0)", "s_barrier", rdK(0, 0, 0, 0), rdK(0, 0, 0, 1)] + [rdV(0, 0, 0, i) for i in range(4)]
    o += [f"v_xor_b32 v{VKWR}, 0x8000, v{VKWR}"] + [f"v_mov_b32 v{S[3]+8+i}, 0" for i in range(8)]
    o += [f"v_accvgpr_write_b32 a{VF[1]+4+i}, 0" for i in range(4)]
    o += ["s_waitcnt lgkmcnt(0)", qk(0, 0, 0, 0), qk(0, 0, 0, 1), "s_nop 7", "s_nop 3"]
    return o
def slow_path():
    a = [f"v_mov_b32 v{VLIN2}, v{VLIN}", "s_waitcnt vmcnt(0)"] + [ldQ(p, i) for p in range(2) for i in range(4)] + ["s_waitcnt vmcnt(0)"]
    for p in range(2): a += norm(QG(p), True) + ["s_nop 0"] + qswap(p)
    a += [f"v_mov_b32 v{MX[i]}, 0xff800000" for i in range(4)] + s_stage()
    m = s_loop('max', 'm')
    b = []
    for i in range(4):
        b += [f"v_mov_b32 v{T0}, v{MX[i]}", f"v_mov_b32 v{T1}, v{MX[i]}", "s_nop 1", f"v_permlane32_swap_b32 v{T0}, v{T1}", "s_nop 1",
              f"v_max_f32 v{MX[i]}, v{T0}, v{T1}"]
    b += [f"v_xor_b32 v{VKWR}, 0x8000, v{VKWR}"] + s_stage()
    s = s_loop('sub', 's')
    e = ["s_nop 1", pv(1, 3, 3, 1), rs(3, 3, 1), "s_nop 7", "s_nop 7"]
    for qt in range(4):
        x = out_parts(qt); e += x[0] + ["s_nop 0"] + x[1] + x[2] + x[3] + x[4]
    e += ["s_endpgm"]
    return a + m + b + s + e, a + m + m + b + s + s + e

head, pro, fr = prologue()
fast = insert_waits(pro + fast_main(fr)) + stamp_out()
sl, slpath = slow_path()
probs = check_path(fast, "fast") + check_path([mk(x).text for x in head] + slpath, "slow")
if probs:
    print("\n".join(probs[:40])); raise SystemExit("hazards found")

body = fast + ["L_end:", "s_endpgm", "L_slow:"] + sl
hdr = open("cdna_kernels/" + NAME + ".s.ref").read().split("; Override launch")[0]
out = hdr + f"""; Cosine-similarity attention, one workgroup per (head, 512 queries), one wave per SIMD (128 queries).
; S^T = Kn Qn^T on the dense bf16 MFMA, exp2 in place, O^T += V^T P^T and the row sums on the sparse MFMA
; (its index picks the high halves of the fp32 P registers).  |t| <= 11 bounds every logit, so the
; max subtraction is skipped; any other t takes the true-max path (L_slow).
; @launch grid=(256,1,1) block=(256,1,1) lds=65536
.amdgcn_target "amdgcn-amd-amdhsa--gfx950"
.text
.globl {NAME}_kernel
.p2align 8
.type {NAME}_kernel,@function
{NAME}_kernel:
""" + "\n".join(x if x.endswith(":") or x.startswith(".") else "    " + x for x in body) + f"""
.section .rodata,"a"
.p2align 6
.amdhsa_kernel {NAME}_kernel
  .amdhsa_next_free_vgpr 288
  .amdhsa_next_free_sgpr 96
  .amdhsa_accum_offset 256
  .amdhsa_group_segment_fixed_size 0
  .amdhsa_kernarg_size 56
  .amdhsa_user_sgpr_count 2
  .amdhsa_user_sgpr_kernarg_segment_ptr 1
  .amdhsa_system_sgpr_workgroup_id_x 1
  .amdhsa_float_denorm_mode_32 3
.end_amdhsa_kernel
"""
open(sys.argv[1], "w").write(out)
print("wrote", sys.argv[1], len(body), "lines")
```

```python
import re

def rg(b, n, t='v'):
    return f"{t}{b}" if n == 1 else f"{t}[{b}:{b+n-1}]"

_REG = re.compile(r'^-?\|?(abs\()?([vas])(\d+|\[(\d+):(\d+)\])\)?\|?$')
def regs_of(tok):
    tok = tok.strip()
    m = _REG.match(tok)
    if not m:
        if tok == 'vcc': return {('s', 106), ('s', 107)}
        if tok == 'm0': return {('s', 124)}
        if tok == 'exec': return {('s', 126), ('s', 127)}
        return set()
    t = m.group(2)
    if m.group(4): return {(t, i) for i in range(int(m.group(4)), int(m.group(5)) + 1)}
    return {(t, int(m.group(3)))}

TRANS = ('v_exp_', 'v_log_', 'v_rcp_', 'v_rsq_', 'v_sqrt_', 'v_sin_', 'v_cos_')
def passes(mn):
    if '32x32' in mn: return 8
    if '16x16' in mn: return 4
    if '4x4' in mn: return 2
    raise ValueError(mn)

class I:
    def __init__(s, text):
        s.text = text
        t = text.split(';')[0].strip()
        s.label = t.endswith(':')
        s.dir = t.startswith('.') or not t
        p = t.split(None, 1)
        s.mn = p[0] if p else ''
        ops = []
        if len(p) > 1:
            ops = [o.strip() for o in re.split(r',(?![^\[]*\])', p[1])]
            if ops:
                last = ops[-1].split()
                ops[-1] = last[0]
                s.mods = last[1:]
        s.ops = ops
        mn = s.mn
        s.mfma = mn.startswith('v_mfma') or mn.startswith('v_smfmac')
        s.valu = mn.startswith('v_') and not s.mfma
        s.trans = mn.startswith(TRANS)
        s.dot = mn.startswith('v_dot')
        s.vmem = mn.startswith('buffer_') or mn.startswith('global_')
        s.ds = mn.startswith('ds_')
        s.states = 1
        if mn == 's_nop': s.states = int(ops[0], 0) + 1
        if s.label or s.dir: s.states = 0
        R = [regs_of(o) for o in ops]
        s.w = set(); s.r = set()
        if s.label or s.dir: return
        lds_dma = s.vmem and 'lds' in getattr(s, 'mods', [])
        s.lds_dma = lds_dma
        if mn.startswith('buffer_store') or mn.startswith('ds_write') or mn.startswith('global_store') or lds_dma \
           or mn.startswith('s_cmp') or mn.startswith('s_cbranch') or mn.startswith('buffer_atomic') or mn.startswith('global_atomic') \
           or mn in ('s_waitcnt', 's_nop', 's_barrier', 's_branch', 's_endpgm', 's_setprio', 's_sleep', 'buffer_inv', 'buffer_wbl2'):
            for x in R: s.r |= x
            if lds_dma: s.r |= {('s', 124)}
        elif mn.startswith('v_permlane') and 'swap' in mn:
            s.w = R[0] | R[1]; s.r = R[0] | R[1]
        else:
            s.w = R[0] if R else set()
            for x in R[1:]: s.r |= x
            if mn.startswith('v_smfmac') or mn.startswith('v_fmac') or mn.startswith('v_dot2c'):
                s.r |= R[0]
        if s.mfma:
            s.A = R[1]; s.B = R[2]; s.D = R[0]
            s.C = R[0] if mn.startswith('v_smfmac') else R[3]
            s.idx = R[3] if mn.startswith('v_smfmac') else set()
            s.p = passes(mn)

def check_path(lines, what=""):
    ins = [I(x) for x in lines]
    ins = [i for i in ins if not (i.label or i.dir)]
    probs = []
    vec = lambda S: {r for r in S if r[0] in 'va'}
    sca = lambda S: {r for r in S if r[0] == 's'}
    for j, c in enumerate(ins):
        dist = 0
        for k in range(j - 1, max(-1, j - 24), -1):
            p = ins[k]
            need = 0; why = ''
            pw = vec(p.w)
            if p.valu and c.mfma and pw & vec(c.r): need, why = (3 if p.dot else 2), 'valu->mfma'
            if p.mfma:
                d = p.D
                tab = {2: 5, 4: 8, 8: 12}[p.p]
                if c.mfma:
                    if d & (c.A | c.B | c.idx): need, why = tab, 'mfma->mfma AB'
                    elif d & c.C:
                        if c.C == d and c.p == p.p: need, why = (2 if p.p == 2 else 0), 'mfma chain'
                        else: need, why = {2: 4, 4: 6, 8: 10}[p.p], 'mfma->mfma C overlap'
                    elif d & c.D and not (c.C == d):
                        need, why = {2: 4, 4: 6, 8: 10}[p.p], 'mfma->mfma WAW (conservative)'
                elif (c.valu or c.vmem or c.ds) and d & (vec(c.r) | vec(c.w)): need, why = tab, 'mfma->valu/mem'
                if c.valu and vec(p.C) & vec(c.w):
                    n2 = {2: 1, 4: 3, 8: 7}[p.p]
                    if n2 > need: need, why = n2, 'mfma C WAR'
            if p.trans and c.valu and not c.trans and pw & vec(c.r): need, why = max(need, 1), why or 'trans->valu'
            if p.trans and c.valu and c.trans and pw & vec(c.r): need, why = max(need, 1), why or 'trans->trans(cons)'
            if p.dot and (c.valu or c.vmem or c.ds) and pw & (vec(c.r) | vec(c.w)):
                if c.dot and c.mn == p.mn and not (pw & (regs_of(c.ops[1]) | regs_of(c.ops[2]))): pass
                else: need, why = max(need, 3), 'dot->other'
            if p.valu and c.mn.startswith('v_permlane') and pw & vec(c.r): need, why = max(need, 2), 'valu->permlane'
            if p.valu and 'dpp' in c.mn and pw & vec(c.r): need, why = max(need, 2), 'valu->dpp'
            if p.valu and c.mn.startswith('v_read') and pw & vec(c.r): need, why = max(need, 1), 'valu->readlane'
            if p.valu and sca(p.w):
                if c.vmem and sca(p.w) & sca(c.r): need, why = max(need, 5), 'valu sgpr->vmem'
                if c.valu and sca(p.w) & (sca(c.r) | (regs_of('vcc') if c.mn.startswith('v_cndmask') else set())): need, why = max(need, 2), 'valu sgpr->valu'
                if c.mn.startswith('s_') and sca(p.w) & sca(c.r): need, why = max(need, 1), 'valu sgpr->salu(cons)'
            if p.mn.startswith('s_') and ('s', 124) in p.w and c.vmem and c.lds_dma: need, why = max(need, 1), 'm0->dma'
            if p.vmem and ('store' in p.mn) and ('x4' in p.mn or 'x3' in p.mn) and (c.valu or c.mfma) and regs_of(p.ops[0]) & vec(c.w):
                need, why = max(need, 2), 'store data WAR'
            if need > dist:
                probs.append(f"{what}: {why}: need {need} have {dist}:\n    {p.text}\n    {c.text}")
            dist += p.states
    return probs


import subprocess, tempfile, os
def sizes_of(lines):
    txt = '.amdgcn_target "amdgcn-amd-amdhsa--gfx950"\n.text\n'
    uniq = sorted({x for x in lines if not x.endswith(':') and not x.startswith('.')})
    safe = lambda x: re.sub(r'\bL_?\w+( - \w+ - \d+)?', (lambda m: '0x12345' if m.group(1) else '0'), x)
    txt += "\n".join(safe(x) for x in uniq) + "\n"
    r = subprocess.run(["llvm-mc", "-triple=amdgcn-amd-amdhsa", "-mcpu=gfx950", "-show-encoding"], input=txt, capture_output=True, text=True)
    assert r.returncode == 0, r.stderr[:2000]
    enc = [l for l in r.stdout.split("\n") if "encoding:" in l]
    assert len(enc) == len(uniq)
    sz = {x: e.split("encoding:")[1].count(",") + 1 for x, e in zip(uniq, enc)}
    return [sz.get(x, 0) for x in lines]
```

```python
import sys
from asmlib import rg, check_path, I, sizes_of

NAME = "standalone__qk_norm__prompt"
OPT = dict(stamp=None, force_slow=False, nt=True, pref=True, owarm=False, split0=8, splitN=8, q1pos=0, gram=False,
           nconst=40, order="KVQ", spref=False, walk=False, enc=None)
for a in sys.argv[2:]:
    k, v = a.split("=", 1); assert k in OPT, k; OPT[k] = eval(v)

S = [0, 16, 32, 48]
O = [64, 80, 96, 112]
Q = [128, 136, 144, 152]
TMP = 160
KRAW = 192
L = [208, 212, 216, 220]
IDX, VKRD, VVRD, VKWR, VROW, VOUT = 224, 225, 226, 227, 228, 229
VLIN = VKRD
IDENT = 230
ONES = 232
RR = 236
TS = 238
MX = [240, 241, 242, 243]
T0, T1, T2 = 244, 245, 246
JUNK = 247
VLIN2 = 248
GR = 252
KF = [0, 8]
VF = [16, 24]
K0RAW = 16
sQ, sK, sV, sO = 16, 20, 24, 28
sW, sHEAD, sQTR, sT, sCNT, sKOFF, sVOFF, sM0, sQ0, sQ1, sTMP = 32, 33, 34, 35, 36, 37, 38, 39, 40, 41, 42
sOFF = 48
sMB = 56
sMSK = 58
sST = 64

def qk(par, qt, sb, m):
    c = "0" if m == 0 else rg(S[sb], 16)
    return f"v_mfma_f32_32x32x16_bf16 {rg(S[sb],16)}, {rg(KF[par]+4*m,4,'a')}, {rg(Q[qt]+4*m,4)}, {c}"
def pv(par, qt, sb, m):
    return f"v_smfmac_f32_32x32x32_bf16 {rg(O[qt],16)}, {rg(VF[par]+4*m,4,'a')}, {rg(S[sb]+8*m,8)}, v{IDX}"
def rs(qt, sb, m):
    return f"v_smfmac_f32_16x16x64_bf16 {rg(L[qt],4)}, {rg(ONES,4)}, {rg(S[sb]+8*m,8)}, v{IDX}"
def rdK(par, buf, T, m):
    return f"ds_read_b128 {rg(KF[par]+4*m,4,'a')}, v{VKRD} offset:{buf*32768+T*2048+m*1024}"
def rdV(par, buf, T, i):
    return f"ds_read_b64_tr_b16 {rg(VF[par]+2*i,2,'a')}, v{VVRD} offset:{buf*32768+T*2048+(i>>1)*1024+(i&1)*256}"
def ldK(dst, i, so):
    return f"buffer_load_dwordx4 {rg(dst+4*i,4)}, v{VROW}, {rg(sK,4,'s')}, s{so} offen offset:{16*i}"
def ldQ(p, c4):
    return f"buffer_load_dwordx4 {rg(Q[2*p+(c4&1)]+4*(c4>>1),4)}, v{VROW}, {rg(sQ,4,'s')}, s{sQ0+p} offen offset:{16*c4}"
def dmaV(i, so, va=VLIN):
    return f"buffer_load_dwordx4 v{va}, {rg(sV,4,'s')}, s{so} offen offset:{1024*i} lds"
def wrK(src, buf, i):
    return f"ds_write_b128 v{VKWR}, {rg(src+4*i,4)} offset:{buf*32768+512*i}"

def norm_parts(groups, isq):
    R = [g + i for g in groups for i in range(4)]
    dots = [f"v_dot2_f32_bf16 v{RR+(i&1)}, v{R[i]}, v{R[i]}, " + ("0" if i < 2 else f"v{RR+(i&1)}") for i in range(16)]
    x = [f"v_mfma_f32_4x4x4_16b_bf16 {rg(TMP+4*i,4)}, {rg(IDENT,2)}, {rg(R[2*i],2)}, 0" for i in range(8)]
    small = [f"v_add_f32 v{RR}, v{RR}, v{RR+1}", f"v_sqrt_f32 v{RR}, v{RR}", f"v_add_f32 v{RR}, 0x358637bd, v{RR}", f"v_rcp_f32 v{RR}, v{RR}"]
    if isq: small += [f"v_mul_f32 v{RR}, v{TS}, v{RR}"]
    pk = [f"v_pk_mul_f32 {rg(TMP+2*i,2)}, {rg(TMP+2*i,2)}, {rg(RR,2)} op_sel_hi:[1,0]" for i in range(16)]
    cv = [f"v_cvt_pk_bf16_f32 v{R[i]}, v{TMP+2*i}, v{TMP+2*i+1}" for i in range(16)]
    gr = [f"v_mfma_f32_4x4x4_16b_bf16 {rg(GR,4)}, {rg(R[2*i],2)}, {rg(R[2*i],2)}, " + ("0" if i == 0 else rg(GR, 4)) for i in range(8)]
    gsel = [f"v_cndmask_b32 v{RR}, v{GR}, v{GR+1}, {rg(sMSK,2,'s')}", f"v_cndmask_b32 v{RR+1}, v{GR+2}, v{GR+3}, {rg(sMSK,2,'s')}",
            f"v_cndmask_b32 v{RR}, v{RR}, v{RR+1}, {rg(sMSK+2,2,'s')}"]
    return dots, x, small, pk, cv, gr, gsel
def norm(groups, isq):
    dots, x, sm, pk, cv, _, _ = norm_parts(groups, isq)
    o = dots + [x[0], x[1], x[2], sm[0], x[3], sm[1], x[4], sm[2], x[5], sm[3], x[6]] + sm[4:] + [x[7]]
    return o + pk + cv
KG = lambda b: [b, b + 4, b + 8, b + 12]
QG = lambda p: [Q[2*p], Q[2*p+1], Q[2*p] + 4, Q[2*p+1] + 4]
def qswap(p):
    return [f"v_permlane32_swap_b32 v{Q[2*p]+i}, v{Q[2*p+1]+i}" for i in range(8)]

class It:
    def __init__(s, text, deps=(), shadow=0):
        s.text = text; s.deps = list(deps); s.shadow = shadow
def mk(x): return x if isinstance(x, It) else It(x)

def insert_waits(items):
    items = [mk(x) for x in items]
    ins = [I(x.text) for x in items]
    n = len(items)
    idx = {id(x): i for i, x in enumerate(items)}
    cls = [None] * n
    for i, c in enumerate(ins):
        if c.label or c.dir: continue
        if c.ds: cls[i] = 'l'
        elif c.vmem: cls[i] = 'v'
    seq = {'l': [i for i in range(n) if cls[i] == 'l'], 'v': [i for i in range(n) if cls[i] == 'v']}
    import bisect
    done = {'l': -1, 'v': -1}
    waits = {}
    pend = {}
    used = {}
    def need(j, i):
        k = cls[i]
        assert i < j, (items[i].text, items[j].text)
        if done[k] >= i: return
        p = j
        q = j - 1
        while q > i:
            if items[q].shadow:
                if (q + 1) in waits or used.get(q, 0) < items[q].shadow: p = q + 1
                break
            if ins[q].mn == 's_barrier' or ins[q].label: break
            q -= 1
        cnt = bisect.bisect_left(seq[k], p) - bisect.bisect_right(seq[k], i)
        lim = 15 if k == 'l' else 63
        cnt = min(cnt, lim)
        w = waits.setdefault(p, {})
        w[k] = min(w.get(k, 99), cnt)
        pos = bisect.bisect_left(seq[k], p) - w[k] - 1
        done[k] = max(done[k], seq[k][pos])
    for q in range(n):
        if items[q].shadow:
            r = q + 1; c = 0
            while r < n and ins[r].mn.startswith('s_'): c += 1; r += 1
            used[q] = c
    for j, c in enumerate(ins):
        if c.label or c.dir: continue
        if c.mn == 's_waitcnt':
            t = items[j].text
            import re
            for k, nm in (('l', 'lgkmcnt'), ('v', 'vmcnt')):
                m = re.search(nm + r'\((\d+)\)', t)
                if m:
                    pos = bisect.bisect_left(seq[k], j) - int(m.group(1)) - 1
                    if pos >= 0: done[k] = max(done[k], seq[k][pos])
            continue
        want = set()
        for r in (c.r | c.w):
            if r in pend: want.add(pend[r])
        for d in items[j].deps: want.add(idx[id(d)])
        for i in sorted(want): need(j, i)
        for r in list(c.r | c.w):
            if r in pend and done[cls[pend[r]]] >= pend[r]: del pend[r]
        if cls[j] and c.w:
            for r in c.w:
                if r[0] in 'va': pend[r] = j
    out = []
    for j, x in enumerate(items):
        if j in waits:
            w = waits[j]
            out.append("s_waitcnt " + " ".join(f"{nm}({w[k]})" for k, nm in (('v', 'vmcnt'), ('l', 'lgkmcnt')) if k in w))
        out.append(x.text)
    return out

_ns = [0]
def stamp(tag):
    if OPT['enc']:
        a, b, kind, sh = OPT['enc']
        op = 's_memrealtime' if kind == 'rt' else 's_memtime'
        return ([f"{op} {rg(sST,2,'s')}"] if tag == a else []) + ([f"{op} {rg(sST+2,2,'s')}"] if tag == b else [])
    st = OPT['stamp']
    if not st or tag not in st: return []
    return [f"s_memtime {rg(sST + 2 * (1 + st.index(tag)), 2, 's')}"]

def visits_for(c):
    full = [0, 1, 2, 3]
    if c == 0 and OPT['split0']:
        n = OPT['split0']
        return [(c, T, [0, 1]) for T in range(n)] + [(c, T, [2, 3]) for T in range(n)] + [(c, T, full) for T in range(n, 8)]
    if c == 7 and OPT['splitN']:
        n = 8 - OPT['splitN']
        return [(c, T, full) for T in range(n)] + [(c, T, [0, 1]) for T in range(n, 8)] + [(c, T, [2, 3]) for T in range(n, 8)]
    return [(c, T, full) for T in range(8)]

class U:
    def __init__(s, n, qt):
        s.n = n; s.qt = qt
        s.slot = {k: [] for k in ('pre', 'M0', 'M1', 'S1', 'A', 'S0', 'B', 'X0', 'X1', 'E1', 'E4', 'E7', 'E11')}

def out_parts(qt, pkform=True):
    t = TMP + 8 * qt
    a = [f"v_rcp_f32 v{RR}, v{L[qt]}"]
    b = [f"v_pk_mul_f32 {rg(O[qt]+2*i,2)}, {rg(O[qt]+2*i,2)}, {rg(RR,2)} op_sel_hi:[1,0]" for i in range(8)]
    order = [0, 4, 1, 5, 2, 6, 3, 7]
    c = [f"v_cvt_pk_bf16_f32 v{t+i}, v{O[qt]+2*i}, v{O[qt]+2*i+1}" for i in order]
    d = [f"v_permlane16_swap_b32 v{t+i}, v{t+4+i}" for i in range(4)]
    st = [f"buffer_store_dwordx4 {rg(t+4*j,4)}, v{VOUT}, {rg(sO,4,'s')}, s{sQ0+(qt>>1)} offen offset:{(qt&1)*2048+1024*j}" + (" nt" if OPT['nt'] else "")
          for j in range(2)]
    return a, b, c, d, st

def fast_main(first_items):
    V = [v for c in range(8) for v in visits_for(c)]
    units = [U(n, qt) for n, v in enumerate(V) for qt in v[2]]
    first = {}; last = {}
    for i, u in enumerate(units):
        first.setdefault(u.n, i); last[u.n] = i
    NV = len(V)
    reads = {c: list(first_items) if c == 0 else [] for c in range(8)}
    free = {(i, s) for i in range(len(units)) for s in 'AB'}
    def put(i, s, x):
        x = mk(x); units[i].slot[s].append(x); free.discard((i, s)); return x
    for n in range(NV):
        f, l = first[n], last[n]
        if n + 1 < NV:
            c, T, _ = V[n + 1]
            pos = [(f, 'A'), (f, 'B'), (f + 1, 'A'), (f + 1, 'B')] if l - f >= 2 else [(f, 'A'), (f, 'A'), (f, 'B'), (f, 'B')]
            for i in range(4): reads[c].append(put(*pos[i], rdV((n + 1) & 1, c & 1, T, i)))
        if n + 2 < NV:
            c, T, _ = V[n + 2]
            for m in range(2): reads[c].append(put(l, 'AB'[m], rdK(n & 1, c & 1, T, m)))
    cfirst = {}
    for n, v in enumerate(V): cfirst.setdefault(v[0], n)
    def place(lo, x, hi=None):
        for i in range(lo, hi if hi else lo + 4):
            for s in 'AB':
                if (i, s) in free: return i, put(i, s, x)
        for i in range(lo, lo + 8):
            for s in ('M0', 'M1'):
                if not units[i].slot[s]: return i, put(i, s, x)
        raise RuntimeError
    def spread_norm(u0, groups, isq):
        dots, x, sm, pk, cv, gr, gsel = norm_parts(groups, isq)
        if OPT['gram']:
            for k in range(8): put(u0 + k, 'X0', gr[k]); put(u0 + k, 'X1', x[k])
            sm = gsel + sm[1:]
            for k, y in enumerate(sm): put(u0 + 8 + k // 4, ('E1', 'E4', 'E7', 'E11')[k % 4], y)
            e = u0 + 10
        else:
            for y in dots: put(u0, 'pre', y)
            for k, y in enumerate(x): put(u0 + k // 2, 'X%d' % (k & 1), y)
            for k, y in enumerate(sm): put(u0 + 1 + k // 4, ('E1', 'E4', 'E7', 'E11')[k % 4], y)
            e = u0 + 5
        for y in pk + cv: put(e, 'pre', y)
        return e
    bar_unit = {}
    for c in range(1, 8): bar_unit[c] = last[cfirst[c] - 2]
    u = 0
    if OPT['split0']:
        if OPT['q1pos'] > 0:
            for c4 in range(4): u, _ = place(max(u, OPT['q1pos'] - 1), ldQ(1, c4))
        e = spread_norm(2 * OPT['split0'] - 2 - (11 if OPT['gram'] else 6), QG(1), True)
        for y in ["s_nop 0"] + qswap(1): put(e, 'pre', y)
    bars = {}; fills = {}
    for c in range(1, 8):
        lo = 0 if c == 1 else bar_unit[c - 1]
        hi = bar_unit[c]
        if c == 1:
            u = u + 1
            for i in range(4): u, _ = place(u, ldK(KRAW, i, sOFF + 1))
            lo = u + 1
        put(lo, 'S0', f"s_mov_b32 m0, s{sMB + (c & 1)}")
        u = lo + 1; dm = []
        for i in range(4):
            u, y = place(u, dmaV(i, sOFF + c)); dm.append(y)
        n0 = max(u + 1, 2 * OPT['split0'] if c == 1 else 0)
        if c == 1 and not OPT['split0']: n0 = max(n0, 10)
        e = spread_norm(n0, KG(KRAW), False)
        u = e; wr = []
        for i in range(4):
            u, y = place(u, wrK(KRAW, c & 1, i), u + 5); wr.append(y)
        assert u < hi, (c, u, hi)
        if c < 7:
            u += 1
            for i in range(4): u, _ = place(u, It(ldK(KRAW, i, sOFF + c + 1), deps=[wr[i]]))
        bars[c] = put(hi, 'S1', It("s_barrier", deps=dm + wr + reads[c - 1])); fills[c] = dm + wr
    if OPT['pref']:
        place(40, It(f"global_load_dword v{JUNK}, v{T2}, s[44:45]"))
    tail_q = [0, 1, 2, 3]
    if OPT['splitN']:
        lastu = {u.qt: i for i, u in enumerate(units)}
        for qt in (0, 1):
            a, b, c, d, st = out_parts(qt)
            u = lastu[1] + 2 + 2 * qt
            put(u, 'E11', a[0])
            for y in b + c + d: put(u + 1, 'pre', y)
            for j in range(2): put(u + 1 + j, 'M1', st[j])
        tail_q = [2, 3]
    o = []
    N = len(units)
    for i, u in enumerate(units):
        sl = u.slot; s = S[i & 3]
        e = lambda a, b: [y for k in range(a, b) for y in [It(f"v_exp_f32 v{s+k}, v{s+k}")] + sl.get('E%d' % k, [])]
        nx = units[i + 1] if i + 1 < N else None
        pr = units[i - 1] if i else None
        o += stamp(f"u{i}") + sl['pre']
        sh = lambda t, cap: It(t, shadow=cap)
        rcap = lambda k: 1 if sl[k] else 2
        o += ([sh(qk(nx.n & 1, nx.qt, (i + 1) & 3, 0), 1)] if nx else []) + sl['M0'] + e(0, 3)
        o += ([sh(qk(nx.n & 1, nx.qt, (i + 1) & 3, 1), 1)] if nx else []) + sl['M1'] + e(3, 6)
        o += ([sh(pv(pr.n & 1, pr.qt, (i - 1) & 3, 1), 0 if sl['S1'] else 2)] if pr else []) + sl['S1'] + e(6, 9)
        o += ([sh(rs(pr.qt, (i - 1) & 3, 1), rcap('A'))] if pr else []) + sl['A'] + e(9, 10)
        o += [sh(pv(u.n & 1, u.qt, i & 3, 0), 2)] + sl['S0'] + e(10, 13)
        o += [sh(rs(u.qt, i & 3, 0), rcap('B'))] + sl['B'] + e(13, 14) + sl['X0'] + e(14, 15) + sl['X1'] + e(15, 16)
    pos = {id(x): k for k, x in enumerate(o)}
    for c in range(1, 8):
        assert all(pos[id(x)] > pos[id(bars[c])] for x in reads[c])
        if c > 1: assert all(pos[id(x)] > pos[id(bars[c - 1])] for x in fills[c])
    u = units[-1]
    o += stamp("end")
    a, b, c, d, st = out_parts(tail_q[0])
    o += [a[0], "s_nop 0", pv(u.n & 1, u.qt, (N - 1) & 3, 1), rs(u.qt, (N - 1) & 3, 1)]
    for k, qt in enumerate(tail_q):
        a, b, c, d, st = out_parts(qt)
        o += (a + ["s_nop 0"] if k else []) + b + c + d + st
    return o

def consts():
    o = [f"v_mov_b32 v{IDX}, 0xdddddddd",
         f"v_lshrrev_b32 v{T1}, 5, v0", f"v_lshlrev_b32 v{T1}, 11, v{T1}", f"v_and_b32 v{VKWR}, 31, v0",
         f"v_lshl_add_u32 v{VKWR}, v{VKWR}, 4, v{T1}",
         f"v_and_b32 v{T1}, 1, v0", f"v_lshlrev_b32 v{T1}, 4, v{T1}", f"v_mov_b32 v{T0}, 0x3f80", f"v_lshlrev_b32 v{T0}, v{T1}, v{T0}",
         f"v_and_b32 v{T1}, 2, v0", f"v_cmp_eq_u32 vcc, 0, v{T1}",
         f"v_and_b32 v{VOUT}, 15, v0", f"v_lshlrev_b32 v{VOUT}, 6, v{VOUT}",
         f"v_cndmask_b32 v{IDENT}, 0, v{T0}, vcc", f"v_cndmask_b32 v{IDENT+1}, v{T0}, 0, vcc",
         f"v_and_b32 v{T1}, 48, v0", f"v_or_b32 v{VOUT}, v{VOUT}, v{T1}",
         f"v_and_b32 v{T1}, 32, v0",
         f"v_lshlrev_b32 v{VVRD}, 4, v{T1}", f"v_and_b32 v{T1}, 12, v0", f"v_lshl_add_u32 v{VVRD}, v{T1}, 4, v{VVRD}",
         f"v_and_b32 v{T1}, 1, v0", f"v_lshl_add_u32 v{VVRD}, v{T1}, 5, v{VVRD}",
         f"v_and_b32 v{T1}, 16, v0", f"v_add_u32 v{VVRD}, v{VVRD}, v{T1}",
         f"v_and_b32 v{T1}, 2, v0", f"v_lshl_add_u32 v{VVRD}, v{T1}, 2, v{VVRD}",
         f"v_and_b32 v{T1}, 7, v0", f"v_cmp_eq_u32 vcc, 0, v{T1}",
         f"v_add_u32 v{VVRD}, 0x4000, v{VVRD}", f"v_mov_b32 v{T0}, 0x3f803f80",
         f"v_cndmask_b32 v{ONES}, 0, v{T0}, vcc", f"v_cndmask_b32 v{ONES+1}, 0, v{T0}, vcc",
         f"v_cmp_eq_u32 vcc, 4, v{T1}", f"v_mov_b32 v{L[0]}, 0", f"v_mov_b32 v{L[0]+1}, 0",
         f"v_cndmask_b32 v{ONES+2}, 0, v{T0}, vcc", f"v_cndmask_b32 v{ONES+3}, 0, v{T0}, vcc"]
    o += [f"v_mov_b32 v{L[0]+i}, 0" for i in range(2, 16)] + [f"v_mov_b32 v{O[0]+i}, 0" for i in range(64)]
    if OPT['gram']:
        o += [f"s_mov_b32 s{sMSK}, 0xaaaaaaaa", f"s_mov_b32 s{sMSK+1}, 0xaaaaaaaa", f"s_mov_b32 s{sMSK+2}, 0xcccccccc", f"s_mov_b32 s{sMSK+3}, 0xcccccccc"]
    return o

def prologue():
    o = ["s_cmp_ge_u32 s2, 256", "s_cbranch_scc1 L_end"]
    if OPT['stamp']: o += [f"s_memtime {rg(sST,2,'s')}", f"s_memrealtime {rg(sST+18,2,'s')}"]
    o += stamp("start")
    o += ["s_load_dwordx8 s[4:11], s[0:1], 0", "s_load_dwordx2 s[12:13], s[0:1], 32"]
    if OPT['stamp']: o += ["s_load_dwordx2 s[14:15], s[0:1], 48"]
    if OPT['pref']:
        o += ["s_getpc_b64 s[44:45]", f"v_lshlrev_b32 v{T2}, 7, v0", f"global_load_dword v{JUNK}, v{T2}, s[44:45]"]
    o += [f"v_readfirstlane_b32 s{sW}, v0",
          f"s_and_b32 s{sHEAD}, s2, 7", f"s_lshr_b32 s{sTMP}, s2, 5", f"s_lshl_b32 s{sTMP}, s{sTMP}, 3",
          f"s_or_b32 s{sHEAD}, s{sHEAD}, s{sTMP}", f"s_bfe_u32 s{sQTR}, s2, 0x20003",
          f"s_lshr_b32 s{sW}, s{sW}, 6",
          f"v_and_b32 v{T0}, 63, v0", f"v_lshlrev_b32 v{VROW}, 6, v{T0}", f"v_lshlrev_b32 v{VLIN}, 4, v{T0}",
          f"s_lshl_b32 s{sOFF}, s{sW}, 12", f"s_add_u32 s{sMB}, s{sOFF}, 0x4000", f"s_mov_b32 m0, s{sMB}",
          f"s_lshl_b32 s{sQ0}, s{sW}, 13",
          f"s_lshl_b32 s{sTMP}, s{sHEAD}, 17", f"s_lshl_b32 s{sTMP+1}, s{sQTR}, 15", f"s_add_u32 s{sTMP+1}, s{sTMP+1}, s{sTMP}",
          f"s_and_b32 s46, s{sHEAD}, 30", f"s_lshl_b32 s46, s46, 1",
          f"s_mov_b32 s{sK+2}, 0x20000", f"s_mov_b32 s{sK+3}, 0x20000", f"s_mov_b32 s{sV+2}, 0x20000", f"s_mov_b32 s{sV+3}, 0x20000",
          f"s_mov_b32 s{sQ+2}, 0x8000", f"s_mov_b32 s{sQ+3}, 0x20000"]
    cs = consts()
    nc = OPT['nconst']
    o += cs[:nc] + stamp("ka0") + ["s_waitcnt lgkmcnt(0)"] + stamp("ka1")
    grp = {'K': [f"s_add_u32 s{sK}, s6, s{sTMP}", f"s_addc_u32 s{sK+1}, s7, 0"] + [ldK(K0RAW, i, sOFF) for i in range(4)],
           'Q': [f"s_add_u32 s{sQ}, s4, s{sTMP+1}", f"s_addc_u32 s{sQ+1}, s5, 0"] + [ldQ(0, i) for i in range(4)]}
    dm = [It(dmaV(i, sOFF)) for i in range(4)]
    grp['V'] = [f"s_add_u32 s{sV}, s8, s{sTMP}", f"s_addc_u32 s{sV+1}, s9, 0"] + dm
    for k, g in enumerate(OPT['order']):
        o += grp[g]
        if k == 0: o += [f"s_load_dword s{sT}, s[10:11], s46"]
    o += [f"s_add_u32 s{sQ1}, s{sQ0}, 0x1000"]
    if not OPT['split0']: o += [ldQ(1, i) for i in range(4)]
    o += stamp("iss")
    if OPT['spref']:
        o += [f"s_load_dword s47, s[44:45], {4096*i}" for i in range(1, 11)]
    o += [f"s_add_u32 s{sO}, s12, s{sTMP+1}", f"s_addc_u32 s{sO+1}, s13, 0", f"s_mov_b32 s{sO+2}, 0x8000", f"s_mov_b32 s{sO+3}, 0x20000",
          f"s_add_u32 s{sMB+1}, s{sMB}, 0x8000"]
    o += [f"s_add_u32 s{sOFF+c}, s{sOFF+c-1}, 0x4000" for c in range(1, 8)]
    o += cs[nc:]
    if OPT['pref']:
        o += [f"v_add_u32 v{T2}, 0x8000, v{T2}", f"v_min_u32 v{T2}, L_slow - {NAME}_kernel - 256, v{T2}"]
    o += ["s_waitcnt lgkmcnt(0)", f"s_and_b32 s{sTMP}, s{sHEAD}, 1", f"s_lshl_b32 s{sTMP}, s{sTMP}, 4",
          f"s_lshr_b32 s{sT}, s{sT}, s{sTMP}", f"s_lshl_b32 s{sT}, s{sT}, 16",
          f"v_mov_b32 v{TS}, 0x3fb8aa3b", f"v_mul_f32 v{TS}, s{sT}, v{TS}"]
    o += [f"s_and_b32 s{sTMP}, s{sT}, 0x7fffffff", f"s_cmp_gt_u32 s{sTMP}, " + ("0" if OPT['force_slow'] else "0x41300000"), "s_cbranch_scc1 L_slow"]
    head = list(o)
    if OPT['walk']:
        o += ["s_mov_b64 vcc, -1", "s_branch L_pad0", "L_walk_done:", "s_mov_b64 vcc, 0", "s_branch L_main", ".p2align 12", "L_main:"]
    o += stamp("cst")
    nk = norm(KG(K0RAW), False)
    wr = [It(wrK(K0RAW, 0, i)) for i in range(4)]
    V0 = visits_for(0)
    fr = [It(rdK(0, 0, V0[0][1], m)) for m in range(2)] + [It(rdK(1, 0, V0[1][1], m)) for m in range(2)] + [It(rdV(0, 0, V0[0][1], i)) for i in range(4)]
    q1 = [ldQ(1, i) for i in range(4)] if OPT['split0'] and OPT['q1pos'] == 0 else []
    if OPT['owarm']: q1 += [f"buffer_load_dword v{JUNK}, v{VLIN}, {rg(sO,4,'s')}, s{sQ0} offen"]
    nq = norm(QG(0), True) + ["s_nop 0"] + qswap(0)
    if not OPT['split0']: nq += norm(QG(1), True) + ["s_nop 0"] + qswap(1)
    kpart = nk[:1] + stamp("k0") + nk[1:] + wr + stamp("k1")
    bar = [It("s_barrier", deps=dm + wr)] + stamp("bar") + fr
    qpart = nq[:1] + stamp("q0") + nq[1:] + stamp("q1")
    if OPT['order'].index('Q') > OPT['order'].index('V'): o += kpart + q1 + bar + qpart
    elif OPT['order'][0] == 'K': o += kpart + q1 + qpart + bar
    else: o += qpart + q1 + kpart + bar
    o += ["s_nop 0", qk(0, V0[0][2][0], 0, 0), qk(0, V0[0][2][0], 0, 1), "s_nop 7", "s_nop 2"]
    return head, o, fr

def stamp_out():
    if OPT['enc']:
        sh = OPT['enc'][3]
        return stamp("sti") + ["s_waitcnt vmcnt(0)"] + stamp("fin") + [f"s_memrealtime {rg(sST+4,2,'s')}", "s_waitcnt lgkmcnt(0)",
                f"s_sub_u32 s4, s{sST+2}, s{sST}", (f"s_lshl_b32 s4, s4, {sh}" if sh >= 0 else f"s_lshr_b32 s4, s4, {-sh}"), "s_min_u32 s4, s4, 50000",
                "L_spin:", "s_sleep 4", f"s_memrealtime {rg(sST+6,2,'s')}", "s_waitcnt lgkmcnt(0)", f"s_sub_u32 s5, s{sST+6}, s{sST+4}", "s_cmp_lt_u32 s5, s4", "s_cbranch_scc1 L_spin"]
    if not OPT['stamp']: return []
    o = stamp("sti") + ["s_waitcnt vmcnt(0)", f"s_memtime {rg(sST+14,2,'s')}", f"s_memrealtime {rg(sST+16,2,'s')}", "s_waitcnt lgkmcnt(0)"]
    o += ["s_mov_b32 s4, s14", "s_mov_b32 s5, s15", "s_mov_b32 s6, 0x100000", "s_mov_b32 s7, 0x20000",
          f"s_lshl_b32 s8, s2, 2", f"s_add_u32 s8, s8, s{sW}", "s_lshl_b32 s8, s8, 6", "v_mov_b32 v1, 0"]
    for i in range(10):
        o += [f"v_mov_b32 v2, s{sST+2*i}", f"buffer_store_dword v2, v1, s[4:7], s8 offen offset:{4*i}"]
    return o

def s_unit(T, qt, mode, side):
    nT, nq = (T, qt + 1) if qt < 3 else (T + 1, 0)
    pT, pq = (T, qt - 1) if qt > 0 else (T - 1, 3)
    s = S[qt]
    if mode == 'max':
        mx = [f"v_max3_f32 v{MX[qt]}, v{s+2*i}, v{s+2*i+1}, v{MX[qt]}" for i in range(8)]
        return [qk(nT & 1, nq, nq, 0), qk(nT & 1, nq, nq, 1)] + mx + side + ["s_nop 3"]
    E = lambda a, b: [x for i in range(a, b) for x in (f"v_sub_f32 v{s+i}, v{s+i}, v{MX[qt]}", f"v_exp_f32 v{s+i}, v{s+i}")]
    return ([qk(nT & 1, nq, nq, 0)] + E(0, 3) + [qk(nT & 1, nq, nq, 1)] + E(3, 6) + [pv(pT & 1, pq, pq, 1)] + E(6, 9) + [rs(pq, pq, 1)]
            + side + E(9, 10) + [pv(T & 1, qt, qt, 0)] + E(10, 13) + [rs(qt, qt, 0)] + E(13, 16))
def s_loop(mode, tag):
    o = []
    for T in range(8):
        n = (T + 1) & 7
        if T == 2: o += ["s_waitcnt vmcnt(4)"] + norm(KG(KRAW), False) + [wrK(KRAW, 0, i) for i in range(4)]
        for qt in range(4):
            side = []
            if qt == 0:
                side = ["s_waitcnt vmcnt(4) lgkmcnt(0)", "s_barrier"] if T == 7 else ["s_waitcnt lgkmcnt(0)"]
                side += [rdK(n & 1, 0, n, 0), rdK(n & 1, 0, n, 1)]
            if qt == 1: side = [rdV(n & 1, 0, n, i) for i in range(4)]
            if qt == 2: side = ["s_waitcnt lgkmcnt(0)"]
            if qt == 3:
                if T == 0: side = [f"s_xor_b32 s{sM0}, s{sM0}, 0x8000", f"s_mov_b32 m0, s{sM0}", f"s_add_u32 s{sVOFF}, s{sVOFF}, 0x4000"] + [dmaV(i, sVOFF, VLIN2) for i in range(4)]
                if T == 4: side = [f"s_add_u32 s{sKOFF}, s{sKOFF}, 0x4000"] + [ldK(KRAW, i, sKOFF) for i in range(4)]
                if T == 6: side = [f"v_xor_b32 v{r}, 0x8000, v{r}" for r in (VKRD, VVRD, VKWR)]
                if T == 7: side = [f"s_add_u32 s{sCNT}, s{sCNT}, 1", f"s_cmp_lg_u32 s{sCNT}, 8"]
            o += s_unit(T, qt, mode, side)
    o += [f"s_cbranch_scc1 L{tag}_loop"]
    return [f"L{tag}_loop:"] + o
def s_stage():
    o = ["s_waitcnt vmcnt(0) lgkmcnt(0)", "s_barrier", "s_nop 7", "s_nop 7",
         f"s_mov_b32 s{sKOFF}, s{sOFF}", f"s_mov_b32 s{sVOFF}, s{sOFF}", f"s_mov_b32 s{sM0}, s{sMB}", f"s_mov_b32 m0, s{sM0}", f"s_mov_b32 s{sCNT}, 0"]
    o += [ldK(K0RAW, i, sKOFF) for i in range(4)] + [dmaV(i, sVOFF, VLIN2) for i in range(4)]
    o += [f"s_add_u32 s{sKOFF}, s{sKOFF}, 0x4000"] + [ldK(KRAW, i, sKOFF) for i in range(4)]
    o += ["s_waitcnt vmcnt(8)"] + norm(KG(K0RAW), False) + [wrK(K0RAW, 0, i) for i in range(4)]
    o += ["s_waitcnt vmcnt(4) lgkmcnt(0)", "s_barrier", rdK(0, 0, 0, 0), rdK(0, 0, 0, 1)] + [rdV(0, 0, 0, i) for i in range(4)]
    o += [f"v_xor_b32 v{VKWR}, 0x8000, v{VKWR}"] + [f"v_mov_b32 v{S[3]+8+i}, 0" for i in range(8)]
    o += [f"v_accvgpr_write_b32 a{VF[1]+4+i}, 0" for i in range(4)]
    o += ["s_waitcnt lgkmcnt(0)", qk(0, 0, 0, 0), qk(0, 0, 0, 1), "s_nop 7", "s_nop 3"]
    return o
def slow_path():
    a = [f"v_mov_b32 v{VLIN2}, v{VLIN}", "s_waitcnt vmcnt(0)"] + [ldQ(p, i) for p in range(2) for i in range(4)] + ["s_waitcnt vmcnt(0)"]
    for p in range(2): a += norm(QG(p), True) + ["s_nop 0"] + qswap(p)
    a += [f"v_mov_b32 v{MX[i]}, 0xff800000" for i in range(4)] + s_stage()
    m = s_loop('max', 'm')
    b = []
    for i in range(4):
        b += [f"v_mov_b32 v{T0}, v{MX[i]}", f"v_mov_b32 v{T1}, v{MX[i]}", "s_nop 1", f"v_permlane32_swap_b32 v{T0}, v{T1}", "s_nop 1",
              f"v_max_f32 v{MX[i]}, v{T0}, v{T1}"]
    b += [f"v_xor_b32 v{VKWR}, 0x8000, v{VKWR}"] + s_stage()
    s = s_loop('sub', 's')
    e = ["s_nop 1", pv(1, 3, 3, 1), rs(3, 3, 1), "s_nop 7", "s_nop 7"]
    for qt in range(4):
        x = out_parts(qt); e += x[0] + ["s_nop 0"] + x[1] + x[2] + x[3] + x[4]
    e += ["s_endpgm"]
    return a + m + b + s + e, a + m + m + b + s + s + e

head, pro, fr = prologue()
fast = insert_waits(pro + fast_main(fr)) + stamp_out()
if OPT['walk']:
    k = fast.index("L_main:")
    sz = sizes_of(fast)
    o = fast[:k + 1]; a = 0; page = 1; pads = []
    for x, n in zip(fast[k + 1:], sz[k + 1:]):
        if a >= page * 4096 + OPT['walk'] - 1:
            pads.append(len(o)); o += [f"L_pad{page-1}:", f"s_cbranch_vccnz L_pad{page}"]; a += 4; page += 1
        o.append(x); a += n
    o[pads[-1] + 1] = "s_cbranch_vccnz L_walk_done"
    fast = o
sl, slpath = slow_path()
probs = check_path(fast, "fast") + check_path([mk(x).text for x in head] + slpath, "slow")
if probs:
    print("\n".join(probs[:40])); raise SystemExit("hazards found")

body = fast + ["L_end:", "s_endpgm", "L_slow:"] + sl
hdr = open("cdna_kernels/" + NAME + ".s.ref").read().split("; Override launch")[0]
out = hdr + f"""; Cosine-similarity attention, one workgroup per (head, 512 queries), one wave per SIMD (128 queries).
; S^T = Kn Qn^T on the dense bf16 MFMA, exp2 in place, O^T += V^T P^T and the row sums on the sparse MFMA
; (its index picks the high halves of the fp32 P registers).  |t| <= 11 bounds every logit, so the
; max subtraction is skipped; any other t takes the true-max path (L_slow).
; @launch grid=(256,1,1) block=(256,1,1) lds=65536
.amdgcn_target "amdgcn-amd-amdhsa--gfx950"
.text
.globl {NAME}_kernel
.p2align 8
.type {NAME}_kernel,@function
{NAME}_kernel:
""" + "\n".join(x if x.endswith(":") or x.startswith(".") else "    " + x for x in body) + f"""
.section .rodata,"a"
.p2align 6
.amdhsa_kernel {NAME}_kernel
  .amdhsa_next_free_vgpr 288
  .amdhsa_next_free_sgpr 96
  .amdhsa_accum_offset 256
  .amdhsa_group_segment_fixed_size 0
  .amdhsa_kernarg_size 56
  .amdhsa_user_sgpr_count 2
  .amdhsa_user_sgpr_kernarg_segment_ptr 1
  .amdhsa_system_sgpr_workgroup_id_x 1
  .amdhsa_float_denorm_mode_32 3
.end_amdhsa_kernel
"""
open(sys.argv[1], "w").write(out)
print("wrote", sys.argv[1], len(body), "lines")
```
